```python
import torch

def _softmax(x, axis=-1):
    return torch.softmax(x, dim=axis)
def _gelu(x):
    return torch.nn.functional.gelu(x, approximate="tanh")
def _silu(x):
    return torch.nn.functional.silu(x)
def _sigmoid(x):
    return torch.sigmoid(x)
def _layernorm(x, axis=-1, eps=1e-5):
    m = x.mean(dim=axis, keepdim=True)
    v = x.var(dim=axis, keepdim=True, unbiased=False)
    return (x - m) / torch.sqrt(v + eps)
def _scatter_add(tgt, idx, src, axis=0):
    return tgt.clone().index_add_(axis, idx, src)
def _segment_sum(src, seg, n):
    out = torch.zeros((n,) + src.shape[1:], dtype=src.dtype)
    return out.index_add_(0, seg, src)
def _pad(x, pw):
    flat = tuple(v for pair in reversed(pw) for v in pair)
    return torch.nn.functional.pad(x, flat)

kernel_name = 'recurrent_scan__sliding_local_dilated__glu_gated_swiglu__prompt'

def setup_inputs():

    _w = (lambda a: (lambda t: t.to(torch.bfloat16) if t.is_floating_point() else t)(torch.as_tensor(a)))
    def _A_setup():
        B, S, D = 1, 2048, 1024
        return {
            "x": _w((lambda *s: torch.randn(*s, dtype=torch.bfloat16) * 0.05)(B, S, D)),
            "wqkv": _w((lambda *s: torch.randn(*s, dtype=torch.bfloat16) * 0.2)(D, 3 * D)),
            "wo": _w((lambda *s: torch.randn(*s, dtype=torch.bfloat16) * 0.2)(D, D)),
        }
    _A_in = _A_setup()

    def _B_setup():
        B, S, D, F = 1, 2048, 1024, 3584
        return {
            "x": _w((lambda *s: torch.randn(*s, dtype=torch.bfloat16) * 0.05)(B, S, D)),
            "w1": _w((lambda *s: torch.randn(*s, dtype=torch.bfloat16) * 0.1)(D, F) * (2.0 / D) ** 0.5),
            "w3": _w((lambda *s: torch.randn(*s, dtype=torch.bfloat16) * 0.1)(D, F) * (2.0 / D) ** 0.5),
            "w2": _w((lambda *s: torch.randn(*s, dtype=torch.bfloat16) * 0.1)(F, D) * (2.0 / F) ** 0.5),
        }
    _B_in = _B_setup()

    return {
        "A_x": _A_in["x"],
        "A_wqkv": _A_in["wqkv"],
        "A_wo": _A_in["wo"],
        "B_x": _B_in["x"],
        "B_w1": _B_in["w1"],
        "B_w3": _B_in["w3"],
        "B_w2": _B_in["w2"],
    }

def reference(A_x, A_wqkv, A_wo, B_x, B_w1, B_w3, B_w2):
    def _A_ref(x, wqkv, wo):
        B, S, D = x.shape
        H = 32; Dh = D // H
        W, dil = 8, 2
        qkv = (lambda x, *d: x.permute(*d))((x @ wqkv).reshape(B, S, 3, H, Dh), 2, 0, 3, 1, 4)
        q, k, v = qkv[0], qkv[1], qkv[2]
        scale = Dh ** -0.5
        pos = torch.arange(S)
        off = torch.arange(W) * dil
        idx = pos[:, None] - off[None, :]
        mask = idx >= 0
        idx_c = torch.where(mask, idx, 0).reshape(-1)
        kg = k[:, :, idx_c, :].reshape(B, H, S, W, Dh)
        vg = v[:, :, idx_c, :].reshape(B, H, S, W, Dh)
        logits = torch.einsum("bhsd,bhswd->bhsw", q, kg) * scale
        logits = torch.where(mask[None, None, :, :], logits, -1e9)
        attn = _softmax(logits, axis=-1)
        o = torch.einsum("bhsw,bhswd->bhsd", attn, vg)
        return (lambda x, *d: x.permute(*d))(o, 0, 2, 1, 3).reshape(B, S, D) @ wo

    def _B_ref(x, w1, w3, w2):
        gate = torch.einsum("bsd,df->bsf", x, w1)
        up = torch.einsum("bsd,df->bsf", x, w3)
        h = _silu(gate) * up
        out = torch.einsum("bsf,fd->bsd", h, w2)
        return out

    x = A_x
    xn = _layernorm(x, axis=-1)
    s = _A_ref(xn, A_wqkv, A_wo)
    g = _silu(_B_ref(xn, B_w1, B_w3, B_w2))
    return x + s * g
```

```python
class Asm:
    def __init__(self):
        self.lines = []
        self._lbl = 0

    def __call__(self, s=""):
        for l in s.split("\n"):
            self.lines.append("    " + l.strip() if l.strip() and not l.strip().endswith(":") else l.strip())

    def label(self, name):
        self.lines.append(name + ":")

    def newlabel(self, base):
        self._lbl += 1
        return f"L_{base}_{self._lbl}"

    def comment(self, s):
        self.lines.append("    ; " + s)

    def text(self):
        return "\n".join(self.lines) + "\n"


def vr(a, n):
    return f"v[{a}:{a+n-1}]"


def sr(a, n=2):
    return f"s[{a}:{a+n-1}]"


WS_XN = 0x0
WS_QKV = 0x400000
WS_H = 0x1000000
WS_O = 0x1E00000
WS_END = 0x2200000

KA_X, KA_WQKV, KA_WO, KA_BX, KA_W1, KA_W3, KA_W2, KA_OUT, KA_DBG, KA_WS = [8 * i for i in range(10)]


def kernel_header(a, name):
    a.lines.append(".globl " + name)
    a.lines.append(".p2align 8")
    a.lines.append(f".type {name},@function")
    a.label(name)


def kernel_descriptor(name, vgpr, sgpr, accum=None):
    accum = accum if accum is not None else ((vgpr + 3) // 4) * 4
    return f""".amdhsa_kernel {name}
  .amdhsa_next_free_vgpr {vgpr}
  .amdhsa_next_free_sgpr {sgpr}
  .amdhsa_accum_offset {accum}
  .amdhsa_group_segment_fixed_size 0
  .amdhsa_kernarg_size 80
  .amdhsa_user_sgpr_count 2
  .amdhsa_user_sgpr_kernarg_segment_ptr 1
  .amdhsa_system_sgpr_workgroup_id_x 1
.end_amdhsa_kernel
"""


def wave_sum_f32(a, v, tmp, s0):
    a(f"s_nop 1")
    for sh in (1, 2, 4, 8):
        a(f"v_add_f32 {tmp}, {v}, {v} row_shr:{sh} bound_ctrl:0")
        a(f"v_mov_b32 {v}, {tmp}")
        a(f"s_nop 1")
    for i, ln in enumerate((15, 31, 47, 63)):
        a(f"v_readlane_b32 s{s0+i}, {v}, {ln}")
    a("s_nop 1")
    a(f"v_mov_b32 {v}, s{s0}")
    a(f"v_add_f32 {v}, s{s0+1}, {v}")
    a(f"v_add_f32 {v}, s{s0+2}, {v}")
    a(f"v_add_f32 {v}, s{s0+3}, {v}")


def round_bf16_f32(a, dst, src):
    a(f"v_cvt_pk_bf16_f32 {dst}, {src}, {src}")
    a(f"v_lshlrev_b32 {dst}, 16, {dst}")
```

```python
from common import *


def gen_att(a, name="att_kernel"):
    kernel_header(a, name)
    early = a.newlabel("att_early")
    a(f"""s_cmp_ge_u32 s2, 1024
    s_cbranch_scc1 {early}
    s_load_dwordx2 s[4:5], s[0:1], {KA_WS}
    v_lshrrev_b32 v1, 6, v0
    v_and_b32 v2, 63, v0
    s_nop 0
    v_readfirstlane_b32 s3, v1
    s_lshr_b32 s6, s3, 1
    s_and_b32 s7, s3, 1
    s_lshl_b32 s8, s2, 1
    s_add_u32 s8, s8, s6
    s_waitcnt lgkmcnt(0)""")
    a("""s_lshl_b32 s9, s7, 10
    v_lshl_add_u32 v3, v2, 4, s9
    v_add_u32 v4, 2048, v3
    v_add_u32 v5, 4096, v3""")
    for w in range(8):
        a(f"""s_sub_i32 s{40+w}, s8, {2*w}
        s_max_i32 s10, s{40+w}, 0
        s_mul_i32 s10, s10, 6144
        s_add_u32 s10, s10, {WS_QKV}
        s_add_u32 s{16+2*w}, s4, s10
        s_addc_u32 s{17+2*w}, s5, 0""")
    a("global_load_dwordx4 v[8:11], v3, s[16:17]")
    for w in range(8):
        a(f"global_load_dwordx4 {vr(12+4*w,4)}, v4, s[{16+2*w}:{17+2*w}]")
    for w in range(8):
        a(f"global_load_dwordx4 {vr(44+4*w,4)}, v5, s[{16+2*w}:{17+2*w}]")
    for w in range(8):
        a(f"s_waitcnt vmcnt({15-w})")
        a(f"v_dot2_f32_bf16 v{76+w}, v8, v{12+4*w}, 0")
        for r in range(1, 4):
            a(f"v_dot2_f32_bf16 v{76+w}, v{8+r}, v{12+4*w+r}, v{76+w}")
    a("s_nop 1")
    for w in range(8):
        a(f"v_add_f32 v84, v{76+w}, v{76+w} quad_perm:[1,0,3,2] row_mask:0xf bank_mask:0xf")
        a("s_nop 1")
        a(f"v_add_f32 v{76+w}, v84, v84 quad_perm:[2,3,0,1] row_mask:0xf bank_mask:0xf")
        a("s_nop 1")
    for w in range(8):
        round_bf16_f32(a, f"v{76+w}", f"v{76+w}")
        a(f"v_mul_f32 v{76+w}, 0x3e3504f3, v{76+w}")
        round_bf16_f32(a, f"v{76+w}", f"v{76+w}")
    for w in range(1, 8):
        lb = a.newlabel("att_v")
        a(f"s_cmp_lt_i32 s{40+w}, 0\n s_cbranch_scc0 {lb}")
        a(f"v_mov_b32 v{76+w}, 0xce6e0000")
        a.label(lb)
    a("v_max_f32 v84, v76, v77")
    for w in range(2, 8):
        a(f"v_max_f32 v84, v84, v{76+w}")
    for w in range(8):
        a(f"v_sub_f32 v{76+w}, v{76+w}, v84")
        a(f"v_mul_f32 v{76+w}, 0x3fb8aa3b, v{76+w}")
        a(f"v_exp_f32 v{76+w}, v{76+w}")
    a("s_nop 0")
    a("v_add_f32 v85, v76, v77")
    for w in range(2, 8):
        a(f"v_add_f32 v85, v85, v{76+w}")
    a("v_rcp_f32 v86, v85")
    a("s_nop 0")
    for w in range(8):
        a(f"v_mul_f32 v87, v{76+w}, v86")
        a(f"v_fma_f32 v88, -v87, v85, v{76+w}")
        a(f"v_fma_f32 v{76+w}, v88, v86, v87")
        round_bf16_f32(a, f"v{76+w}", f"v{76+w}")
    a("s_waitcnt vmcnt(0)")
    for w in range(8):
        for r in range(4):
            src = 44 + 4 * w + r
            a(f"v_lshlrev_b32 v84, 16, v{src}")
            a(f"v_and_b32 v85, 0xffff0000, v{src}")
            if w == 0:
                a(f"v_mul_f32 v{88+2*r}, v76, v84")
                a(f"v_mul_f32 v{89+2*r}, v76, v85")
            else:
                a(f"v_fmac_f32 v{88+2*r}, v{76+w}, v84")
                a(f"v_fmac_f32 v{89+2*r}, v{76+w}, v85")
    for r in range(4):
        a(f"v_cvt_pk_bf16_f32 v{8+r}, v{88+2*r}, v{89+2*r}")
    a(f"""s_lshl_b32 s10, s8, 11
    s_add_u32 s10, s10, {WS_O}
    s_add_u32 s10, s4, s10
    s_addc_u32 s11, s5, 0
    global_store_dwordx4 v3, v[8:11], s[10:11]""")
    a.label(early)
    a("s_endpgm")
    return kernel_descriptor(name, 96, 64)
```

```python
from common import *

BUFSZ = 0xA000
LA, LQ, LG, LU = 0x0, 0x4000, 0x6000, 0x8000
NST = 32

AF = [0, 16]
BF = 32
VB = 72
VA = 82
VOA, VOQ, VOG = 83, 84, 85
T0 = 86
ACC = 96

S_A0, S_A1, S_Q, S_G, S_U = 16, 18, 20, 22, 24
S_MQ, S_MG = 26, 28
S_LA0, S_LA1, S_LQ, S_LG, S_LU = 30, 31, 32, 33, 34
S_W, S_WM, S_WN, S_RB, S_CB = 35, 36, 37, 38, 39
S_CNT = 40
S_T = 44


def acc(j, i):
    return ACC + (j * 4 + i) * 4


def dma_one(a, k, buf):
    off = buf * BUFSZ
    if k == 0:
        a(f"s_add_u32 m0, s{S_LA0}, {off}\n s_nop 0")
        a(f"global_load_lds_dwordx4 v{VOA}, {sr(S_A0)}")
    elif k == 1:
        a(f"s_add_u32 m0, s{S_LA1}, {off}\n s_nop 0")
        a(f"global_load_lds_dwordx4 v{VOA}, {sr(S_A1)}")
        a(f"v_add_u32 v{VOA}, 64, v{VOA}")
    elif k == 2:
        a(f"s_add_u32 m0, s{S_LQ}, {off}")
        a(f"s_mov_b64 exec, {sr(S_MQ)}")
        a(f"global_load_lds_dwordx4 v{VOQ}, {sr(S_Q)}")
        a(f"s_mov_b64 exec, -1")
        a(f"v_add_u32 v{VOQ}, {32*6144}, v{VOQ}")
    elif k == 3:
        a(f"s_add_u32 m0, s{S_LG}, {off}")
        a(f"s_mov_b64 exec, {sr(S_MG)}")
        a(f"global_load_lds_dwordx4 v{VOG}, {sr(S_G)}")
        a(f"s_mov_b64 exec, -1")
    elif k == 4:
        a(f"s_add_u32 m0, s{S_LU}, {off}")
        a(f"s_mov_b64 exec, {sr(S_MG)}")
        a(f"global_load_lds_dwordx4 v{VOG}, {sr(S_U)}")
        a(f"s_mov_b64 exec, -1")
        a(f"v_add_u32 v{VOG}, {32*7168}, v{VOG}")


def read_a(a, aset):
    for i in range(4):
        a(f"ds_read_b128 {vr(AF[aset]+4*i,4)}, v{VA} offset:{i*1024}")


def read_b(a, j):
    a(f"ds_read_b64_tr_b16 {vr(BF+4*j,2)}, v{VB+j}")
    a(f"ds_read_b64_tr_b16 {vr(BF+4*j+2,2)}, v{VB+j} offset:1024")


def stage(a, s_mod4, vm, do_dma, do_reads, do_barrier=True):
    cur = s_mod4 & 1
    nxt = cur ^ 1
    if do_barrier:
        a(f"s_waitcnt vmcnt({vm})")
        a("s_barrier")
    delta = BUFSZ if s_mod4 != 3 else -3 * BUFSZ
    if do_reads:
        a(f"v_add_u32 v{VA}, {delta & 0xffffffff}, v{VA}")
        read_a(a, nxt)
    for j in range(10):
        a(f"s_waitcnt lgkmcnt({14 if do_reads else min(14, 2*(9-j))})")
        for i in range(4):
            a(f"v_mfma_f32_16x16x32_bf16 {vr(acc(j,i),4)}, {vr(BF+4*j,4)}, {vr(AF[cur]+4*i,4)}, {vr(acc(j,i),4)}")
        if do_reads:
            a(f"v_add_u32 v{VB+j}, {delta & 0xffffffff}, v{VB+j}")
            read_b(a, j)
        if do_dma and j < 5:
            dma_one(a, j, (s_mod4 + 3) & 3)


def stamp(a, idx):
    a(f"s_memtime s[{64+2*idx}:{65+2*idx}]")

def gen_gemm1(a, name="gemm1_kernel", diag=False):
    kernel_header(a, name)
    if diag:
        stamp(a, 0)
    end = a.newlabel("g1_end")
    early = a.newlabel("g1_early")
    a(f"""s_cmp_ge_u32 s2, 256
    s_cbranch_scc1 {early}
    s_load_dwordx2 s[4:5], s[0:1], {KA_WQKV}
    s_load_dwordx2 s[6:7], s[0:1], {KA_W1}
    s_load_dwordx2 s[8:9], s[0:1], {KA_W3}
    s_load_dwordx2 s[10:11], s[0:1], {KA_WS}
    s_lshr_b32 s{S_RB}, s2, 5
    s_and_b32 s{S_CB}, s2, 31
    v_lshrrev_b32 v1, 6, v0
    v_and_b32 v2, 63, v0
    s_nop 0
    v_readfirstlane_b32 s{S_W}, v1
    s_and_b32 s{S_WM}, s{S_W}, 3
    s_lshr_b32 s{S_WN}, s{S_W}, 2
    """)
    a("""v_lshrrev_b32 v3, 4, v2
    v_and_b32 v4, 15, v2
    v_bfe_u32 v5, v2, 2, 2
    v_and_b32 v6, 3, v2
    v_lshrrev_b32 v7, 2, v2""")
    def fgray(dst, u, t):
        a(f"v_lshrrev_b32 {dst}, 1, {u}")
        a(f"v_xor_b32 {t}, {u}, {dst}")
        a(f"v_and_b32 {t}, 1, {t}")
        a(f"v_lshl_or_b32 {dst}, {t}, 1, {dst}")
    fgray("v8", "v3", "v9")
    a(f"""v_xor_b32 v8, v6, v8
    v_lshlrev_b32 v8, 4, v8
    v_lshl_add_u32 v{VOA}, v7, 11, v8""")
    a(f"""s_lshr_b32 s{S_T}, s{S_W}, 1
    s_and_b32 s{S_T}, s{S_T}, 1
    s_lshl_b32 s{S_T}, s{S_T}, 2
    v_or_b32 v8, s{S_T}, v3
    v_lshrrev_b32 v9, 1, v4
    v_xor_b32 v9, v9, v8
    v_and_b32 v10, 1, v4
    v_lshl_or_b32 v9, v9, 1, v10
    v_cmp_gt_u32 {sr(S_MQ)}, 12, v9
    v_cmp_gt_u32 {sr(S_MG)}, 14, v9
    v_lshlrev_b32 v9, 4, v9
    v_mul_u32_u24 v{VOQ}, 6144, v3
    v_add_u32 v{VOQ}, v{VOQ}, v9
    v_mul_u32_u24 v{VOG}, 7168, v3
    v_add_u32 v{VOG}, v{VOG}, v9""")
    fgray("v8", "v5", "v9")
    a(f"""v_xor_b32 v8, v3, v8
    v_lshlrev_b32 v8, 4, v8
    s_lshl_b32 s{S_T}, s{S_WM}, 12
    v_lshl_add_u32 v{VA}, v4, 6, v8
    v_add_u32 v{VA}, s{S_T}, v{VA}""")
    a("""v_lshl_add_u32 v8, v3, 3, v5
    v_lshlrev_b32 v8, 8, v8
    v_lshl_add_u32 v8, v6, 3, v8
    v_and_b32 v9, 1, v3
    v_lshl_or_b32 v9, v9, 2, v5""")
    for j in range(10):
        r0, s0 = (LQ, j) if j < 6 else ((LG, j - 6) if j < 8 else (LU, j - 8))
        r1, s1 = (LG, 2 + j) if j < 5 else (LU, 2 + j - 5)
        a(f"""s_cmp_eq_u32 s{S_WN}, 0
        s_cselect_b32 s{S_T}, {s0}, {s1}
        s_mov_b32 s{S_T+2}, {r1}
        s_cselect_b32 s{S_T+1}, {r0}, s{S_T+2}
        v_xor_b32 v10, s{S_T}, v9
        v_lshlrev_b32 v10, 5, v10
        v_add3_u32 v{VB+j}, v10, v8, s{S_T+1}""")
    a("s_waitcnt lgkmcnt(0)")
    a(f"""s_lshl_b32 s{S_T}, s{S_RB}, 19
    s_lshl_b32 s{S_T+1}, s{S_W}, 16
    s_add_u32 s{S_T}, s{S_T}, s{S_T+1}
    s_add_u32 s{S_T}, s{S_T}, {WS_XN}
    s_add_u32 s{S_A0}, s10, s{S_T}
    s_addc_u32 s{S_A0+1}, s11, 0
    s_add_u32 s{S_A1}, s{S_A0}, 32768
    s_addc_u32 s{S_A1+1}, s{S_A0+1}, 0""")
    a(f"""s_mul_i32 s{S_T}, s{S_W}, {4*6144}
    s_mul_i32 s{S_T+1}, s{S_CB}, 192
    s_add_u32 s{S_T}, s{S_T}, s{S_T+1}
    s_add_u32 s{S_Q}, s4, s{S_T}
    s_addc_u32 s{S_Q+1}, s5, 0
    s_mul_i32 s{S_T}, s{S_W}, {4*7168}
    s_mul_i32 s{S_T+1}, s{S_CB}, 224
    s_add_u32 s{S_T}, s{S_T}, s{S_T+1}
    s_add_u32 s{S_G}, s6, s{S_T}
    s_addc_u32 s{S_G+1}, s7, 0
    s_add_u32 s{S_U}, s8, s{S_T}
    s_addc_u32 s{S_U+1}, s9, 0""")
    a(f"""s_lshl_b32 s{S_LA0}, s{S_W}, 11
    s_add_u32 s{S_LA1}, s{S_LA0}, 1024
    s_lshl_b32 s{S_T}, s{S_W}, 10
    s_add_u32 s{S_LQ}, s{S_T}, {LQ}
    s_add_u32 s{S_LG}, s{S_T}, {LG}
    s_add_u32 s{S_LU}, s{S_T}, {LU}""")
    for st in range(3):
        for k in range(5):
            dma_one(a, k, st)
    for r in range(160):
        a(f"v_mov_b32 v{ACC+r}, 0")
    if diag:
        stamp(a, 1)
    a("s_waitcnt vmcnt(10)")
    a("s_barrier")
    if diag:
        stamp(a, 2)
    read_a(a, 0)
    for j in range(10):
        if j in (5,):
            a("s_waitcnt lgkmcnt(4)")
        read_b(a, j)
    loop = a.newlabel("g1_loop")
    a(f"s_mov_b32 s{S_CNT}, 7")
    a.label(loop)
    for u in range(4):
        stage(a, u, 5, True, True)
    a(f"""s_sub_u32 s{S_CNT}, s{S_CNT}, 1
    s_cmp_lg_u32 s{S_CNT}, 0
    s_cbranch_scc1 {loop}""")
    stage(a, 0, 5, True, True)
    stage(a, 1, 5, False, True)
    stage(a, 2, 0, False, True)
    stage(a, 3, 0, False, False, do_barrier=False)
    a("s_nop 15")
    if diag:
        stamp(a, 3)
    a("""v_mbcnt_lo_u32_b32 v2, -1, 0
    v_mbcnt_hi_u32_b32 v2, -1, v2
    v_lshrrev_b32 v3, 4, v2
    v_and_b32 v4, 15, v2""")
    a(f"""s_lshl_b32 s{S_T}, s{S_RB}, 8
    s_lshl_b32 s{S_T+1}, s{S_WM}, 6
    s_add_u32 s{S_T}, s{S_T}, s{S_T+1}
    v_add_u32 v5, s{S_T}, v4""")
    wn1 = a.newlabel("g1_ep_wn1")
    a(f"s_cmp_eq_u32 s{S_WN}, 1\n s_cbranch_scc1 {wn1}")

    def store_qkv2(jlist):
        a(f"""s_mul_i32 s{S_T}, s{S_CB}, 192
        s_add_u32 s{S_T}, s{S_T}, {WS_QKV}
        v_mul_u32_u24 v6, 6144, v5
        v_lshl_add_u32 v6, v3, 3, v6
        v_add_u32 v6, s{S_T}, v6""")
        for i in range(4):
            if i:
                a(f"v_add_u32 v6, {16*6144}, v6")
            for j in jlist:
                b = acc(j, i)
                a(f"v_cvt_pk_bf16_f32 v8, v{b}, v{b+1}")
                a(f"v_cvt_pk_bf16_f32 v9, v{b+2}, v{b+3}")
                a(f"global_store_dwordx2 v6, v[8:9], s[10:11] offset:{j*32}")
                a("s_nop 1")

    def store_h(pairs):
        a(f"""s_mul_i32 s{S_T}, s{S_CB}, 224
        s_add_u32 s{S_T}, s{S_T}, {WS_H}
        v_mul_u32_u24 v6, 7168, v5
        v_lshl_add_u32 v6, v3, 3, v6
        v_add_u32 v6, s{S_T}, v6""")
        for i in range(4):
            if i:
                a(f"v_add_u32 v6, {16*7168}, v6")
            for (jg, ju, slot) in pairs:
                g0, u0 = acc(jg, i), acc(ju, i)
                for r in range(4):
                    round_bf16_f32(a, "v10", f"v{g0+r}")
                    a("v_mul_f32 v11, 0xbfb8aa3b, v10")
                    a("v_exp_f32 v11, v11")
                    a("s_nop 0")
                    a("v_add_f32 v11, 1.0, v11")
                    a("v_rcp_f32 v11, v11")
                    a("s_nop 0")
                    a("v_mul_f32 v10, v10, v11")
                    round_bf16_f32(a, "v10", "v10")
                    round_bf16_f32(a, "v11", f"v{u0+r}")
                    a(f"v_mul_f32 v{12+r}, v10, v11")
                a("v_cvt_pk_bf16_f32 v8, v12, v13")
                a("v_cvt_pk_bf16_f32 v9, v14, v15")
                a(f"global_store_dwordx2 v6, v[8:9], s[10:11] offset:{slot*32}")
                a("s_nop 1")

    store_qkv2(range(6))
    store_h([(6, 8, 0), (7, 9, 1)])
    a(f"s_branch {end}")
    a.label(wn1)
    store_h([(jj, 5 + jj, 2 + jj) for jj in range(5)])
    a.label(end)
    if diag:
        a("s_waitcnt vmcnt(0)")
        stamp(a, 4)
        a("s_waitcnt lgkmcnt(0)")
        a(f"s_lshl_b32 s{S_T}, s2, 3\n s_add_u32 s{S_T}, s{S_T}, s{S_W}\n s_lshl_b32 s{S_T}, s{S_T}, 6\n s_add_u32 s{S_T}, s{S_T}, 0x4000000")
        a(f"v_mov_b32 v2, s{S_T}")
        for i in range(10):
            a(f"v_mov_b32 v3, s{64+i}")
            a(f"global_store_dword v2, v3, s[10:11] offset:{4*i}")
    a("s_endpgm")
    a.label(early)
    a("s_endpgm")
    return kernel_descriptor(name, 256, 80)
```

```python
from common import *

BUFSZ = 0xC000
LA, LB = 0x0, 0x8000

AFR = [0, 16]
BFR = [32, 40]
VAR = 48
VBR = 49
VOA = 52
VOB = 56
VT = 58
ACC_S = 64
ACC_F = 96

S_A, S_B = 16, 18
S_W, S_WM, S_WN, S_RB, S_CB = 20, 21, 22, 23, 24
S_LAW, S_LBW = 25, 26
S_CNT = 27
S_T = 28
S_SA = 32
S_AB = 36


def accr(base, i, jj):
    return base + (jj * 4 + i) * 4


def dma_stage(a, buf):
    off = buf * BUFSZ
    for e in range(8):
        a(f"s_mul_i32 s{S_T}, s{S_SA}, {4*e}")
        a(f"s_add_u32 s{S_AB}, s{S_A}, s{S_T}")
        a(f"s_addc_u32 s{S_AB+1}, s{S_A+1}, 0")
        a(f"s_add_u32 m0, s{S_LAW}, {off + LA + e*1024}")
        a("s_nop 0")
        a(f"global_load_lds_dwordx4 v{VOA + (e & 3)}, {sr(S_AB)}")
    for e in range(4):
        a(f"s_add_u32 s{S_AB}, s{S_B}, {8*e*2048}")
        a(f"s_addc_u32 s{S_AB+1}, s{S_B+1}, 0")
        a(f"s_add_u32 m0, s{S_LBW}, {off + LB + e*1024}")
        a("s_nop 0")
        a(f"global_load_lds_dwordx4 v{VOB + (e & 1)}, {sr(S_AB)}")
    a(f"s_add_u32 s{S_A}, s{S_A}, 256\n s_addc_u32 s{S_A+1}, s{S_A+1}, 0")
    a(f"s_add_u32 s{S_B}, s{S_B}, {128*2048}\n s_addc_u32 s{S_B+1}, s{S_B+1}, 0")


def read_frags(a, st, t, bufoff):
    for i in range(4):
        a(f"ds_read_b128 {vr(AFR[st]+4*i,4)}, v{VT + t} offset:{LA + i*4096}")
    for jj in range(2):
        a(f"ds_read_b64_tr_b16 {vr(BFR[st]+4*jj,2)}, v{VBR+jj} offset:{LB + t*4096}")
        a(f"ds_read_b64_tr_b16 {vr(BFR[st]+4*jj+2,2)}, v{VBR+jj} offset:{LB + t*4096 + 512}")


def stage(a, buf, accbase, vm, dma):
    off = buf * BUFSZ
    a(f"s_waitcnt vmcnt({vm})")
    a("s_barrier")
    read_frags(a, 0, 0, off)
    if dma:
        dma_stage(a, (buf + 2) % 3)
    for t in range(4):
        st = t & 1
        if t < 3:
            read_frags(a, st ^ 1, t + 1, off)
            a("s_waitcnt lgkmcnt(8)")
        else:
            a("s_waitcnt lgkmcnt(0)")
        for jj in range(2):
            for i in range(4):
                r = accr(accbase, i, jj)
                a(f"v_mfma_f32_16x16x32_bf16 {vr(r,4)}, {vr(BFR[st]+4*jj,4)}, {vr(AFR[st]+4*i,4)}, {vr(r,4)}")
        if t == 2:
            delta = BUFSZ if buf != 2 else -2 * BUFSZ
            for rr in [VT, VT + 1, VT + 2, VT + 3, VBR, VBR + 1]:
                a(f"v_add_u32 v{rr}, {delta & 0xffffffff}, v{rr}")


def gen_gemm2(a, name="gemm2_kernel"):
    kernel_header(a, name)
    early = a.newlabel("g2_early")
    a(f"""s_cmp_ge_u32 s2, 256
    s_cbranch_scc1 {early}
    s_load_dwordx2 s[4:5], s[0:1], {KA_WO}
    s_load_dwordx2 s[6:7], s[0:1], {KA_W2}
    s_load_dwordx2 s[8:9], s[0:1], {KA_X}
    s_load_dwordx2 s[10:11], s[0:1], {KA_WS}
    s_load_dwordx2 s[12:13], s[0:1], {KA_OUT}
    s_and_b32 s{S_T}, s2, 7
    s_lshr_b32 s{S_T+1}, s2, 3
    s_lshr_b32 s{S_RB}, s{S_T}, 1
    s_lshl_b32 s{S_RB}, s{S_RB}, 2
    s_lshr_b32 s{S_T+2}, s{S_T+1}, 3
    s_add_u32 s{S_RB}, s{S_RB}, s{S_T+2}
    s_and_b32 s{S_CB}, s{S_T}, 1
    s_lshl_b32 s{S_CB}, s{S_CB}, 3
    s_and_b32 s{S_T+2}, s{S_T+1}, 7
    s_add_u32 s{S_CB}, s{S_CB}, s{S_T+2}
    v_lshrrev_b32 v1, 6, v0
    v_and_b32 v2, 63, v0
    s_nop 0
    v_readfirstlane_b32 s{S_W}, v1
    s_and_b32 s{S_WM}, s{S_W}, 1
    s_lshr_b32 s{S_WN}, s{S_W}, 1""")
    a("""v_lshrrev_b32 v3, 4, v2
    v_and_b32 v4, 15, v2
    v_bfe_u32 v5, v2, 2, 2
    v_and_b32 v6, 3, v2
    v_lshrrev_b32 v7, 3, v2
    v_and_b32 v8, 7, v2""")
    a(f"""v_xor_b32 v9, v3, v4
    v_lshlrev_b32 v9, 4, v9
    v_lshl_add_u32 v9, v4, 8, v9
    s_lshl_b32 s{S_T}, s{S_WM}, 14
    v_add_u32 v{VT}, s{S_T}, v9""")
    for t in range(1, 4):
        a(f"v_xor_b32 v{VT+t}, {t << 6}, v{VT}")
    a(f"""v_lshl_add_u32 v9, v3, 3, v5
    v_lshlrev_b32 v9, 7, v9
    v_lshl_add_u32 v9, v6, 3, v9
    v_lshrrev_b32 v10, 1, v5
    v_and_b32 v11, 1, v3
    v_lshl_or_b32 v10, v11, 1, v10
    s_lshl_b32 s{S_T}, s{S_WN}, 1""")
    for jj in range(2):
        a(f"""s_add_u32 s{S_T+1}, s{S_T}, {jj}
        v_xor_b32 v11, s{S_T+1}, v10
        v_lshl_add_u32 v{VBR+jj}, v11, 5, v9""")
    for e in range(2):
        a(f"""v_and_b32 v9, 1, v3
        v_or_b32 v9, {e << 1}, v9
        v_lshrrev_b32 v10, 1, v8
        v_xor_b32 v10, v10, v9
        v_and_b32 v11, 1, v8
        v_lshl_or_b32 v10, v10, 1, v11
        v_lshlrev_b32 v10, 4, v10
        v_lshl_add_u32 v{VOB+e}, v7, 11, v10""")
    a("s_waitcnt lgkmcnt(0)")
    a(f"""s_lshl_b32 s{S_LAW}, s{S_W}, 13
    s_lshl_b32 s{S_LBW}, s{S_W}, 12""")

    def set_src(first):
        a("""v_mbcnt_lo_u32_b32 v2, -1, 0
        v_mbcnt_hi_u32_b32 v2, -1, v2
        v_lshrrev_b32 v3, 4, v2
        v_and_b32 v4, 15, v2""")
        stride = 2048 if first else 7168
        a(f"s_mov_b32 s{S_SA}, {stride}")
        for q in range(4):
            a(f"""v_or_b32 v9, {4*q}, v3
            v_xor_b32 v9, v4, v9
            v_lshlrev_b32 v9, 4, v9
            v_mul_u32_u24 v10, {stride}, v3
            v_add_u32 v{VOA+q}, v9, v10""")
        a(f"""s_lshl_b32 s{S_T}, s{S_RB}, 7
        s_lshl_b32 s{S_T+1}, s{S_W}, 5
        s_add_u32 s{S_T}, s{S_T}, s{S_T+1}
        s_mul_i32 s{S_T}, s{S_T}, {stride}
        s_add_u32 s{S_T}, s{S_T}, {WS_O if first else WS_H}
        s_add_u32 s{S_A}, s10, s{S_T}
        s_addc_u32 s{S_A+1}, s11, 0""")
        a(f"""s_lshl_b32 s{S_T}, s{S_W}, 16
        s_lshl_b32 s{S_T+1}, s{S_CB}, 7
        s_add_u32 s{S_T}, s{S_T}, s{S_T+1}
        s_add_u32 s{S_B}, s{4 if first else 6}, s{S_T}
        s_addc_u32 s{S_B+1}, s{5 if first else 7}, 0""")

    set_src(True)
    dma_stage(a, 0)
    dma_stage(a, 1)
    for r in range(64):
        a(f"v_mov_b32 v{ACC_S+r}, 0")
    loop = a.newlabel("g2_la")
    a(f"s_mov_b32 s{S_CNT}, 2")
    a.label(loop)
    for b in range(3):
        stage(a, b, ACC_S, 12, True)
    a(f"s_sub_u32 s{S_CNT}, s{S_CNT}, 1\n s_cmp_lg_u32 s{S_CNT}, 0\n s_cbranch_scc1 {loop}")
    set_src(False)
    stage(a, 0, ACC_S, 12, True)
    stage(a, 1, ACC_S, 12, True)
    stage(a, 2, ACC_F, 12, True)
    loop = a.newlabel("g2_lc")
    a(f"s_mov_b32 s{S_CNT}, 8")
    a.label(loop)
    for b in range(3):
        stage(a, b, ACC_F, 12, True)
    a(f"s_sub_u32 s{S_CNT}, s{S_CNT}, 1\n s_cmp_lg_u32 s{S_CNT}, 0\n s_cbranch_scc1 {loop}")
    stage(a, 0, ACC_F, 12, True)
    stage(a, 1, ACC_F, 12, False)
    stage(a, 2, ACC_F, 0, False)
    a("s_nop 15")
    a("""v_mbcnt_lo_u32_b32 v2, -1, 0
    v_mbcnt_hi_u32_b32 v2, -1, v2
    v_lshrrev_b32 v3, 4, v2
    v_and_b32 v4, 15, v2""")
    a(f"""s_lshl_b32 s{S_T}, s{S_RB}, 7
    s_lshl_b32 s{S_T+1}, s{S_WM}, 6
    s_add_u32 s{S_T}, s{S_T}, s{S_T+1}
    v_add_u32 v5, s{S_T}, v4
    v_lshlrev_b32 v5, 11, v5
    v_lshl_add_u32 v5, v3, 3, v5
    s_lshl_b32 s{S_T}, s{S_CB}, 7
    s_lshl_b32 s{S_T+1}, s{S_WN}, 6
    s_add_u32 s{S_T}, s{S_T}, s{S_T+1}
    v_add_u32 v5, s{S_T}, v5""")
    for i in range(4):
        a(f"v_add_u32 v6, {i*16*2048}, v5")
        for jj in range(2):
            b = jj * 4 + i
            a(f"global_load_dwordx2 {vr(8+2*b,2)}, v6, s[8:9] offset:{jj*32}")
    for i in range(4):
        a(f"v_add_u32 v6, {i*16*2048}, v5")
        for jj in range(2):
            b = jj * 4 + i
            sR, fR = accr(ACC_S, i, jj), accr(ACC_F, i, jj)
            a(f"s_waitcnt vmcnt({7 - (i*2+jj)})")
            for r in range(4):
                xs = 8 + 2 * b + (r >> 1)
                round_bf16_f32(a, "v24", f"v{fR+r}")
                a("v_mul_f32 v25, 0xbfb8aa3b, v24")
                a("v_exp_f32 v25, v25")
                a("s_nop 0")
                a("v_add_f32 v25, 1.0, v25")
                a("v_rcp_f32 v25, v25")
                a("s_nop 0")
                a("v_mul_f32 v24, v24, v25")
                round_bf16_f32(a, "v24", "v24")
                round_bf16_f32(a, "v25", f"v{sR+r}")
                a("v_mul_f32 v24, v24, v25")
                round_bf16_f32(a, "v24", "v24")
                if r & 1:
                    a(f"v_and_b32 v25, 0xffff0000, v{xs}")
                else:
                    a(f"v_lshlrev_b32 v25, 16, v{xs}")
                a(f"v_add_f32 v{28+r}, v24, v25")
            a("v_cvt_pk_bf16_f32 v26, v28, v29")
            a("v_cvt_pk_bf16_f32 v27, v30, v31")
            a(f"global_store_dwordx2 v6, v[26:27], s[12:13] offset:{jj*32}")
            a("s_nop 1")
    a.label(early)
    a("s_endpgm")
    return kernel_descriptor(name, 128, 64)
```

```python
from common import *


def gen_ln(a, name="ln_kernel"):
    kernel_header(a, name)
    end = a.newlabel("ln_end")
    a(f"""s_cmp_ge_u32 s2, 512
    s_cbranch_scc1 {end}
    s_load_dwordx2 s[4:5], s[0:1], {KA_X}
    s_load_dwordx2 s[6:7], s[0:1], {KA_WS}
    v_lshrrev_b32 v1, 6, v0
    v_and_b32 v2, 63, v0
    s_lshl_b32 s3, s2, 2
    v_add_u32 v1, s3, v1
    v_lshlrev_b32 v3, 11, v1
    v_lshl_add_u32 v3, v2, 5, v3
    s_waitcnt lgkmcnt(0)
    global_load_dwordx4 v[4:7], v3, s[4:5]
    global_load_dwordx4 v[8:11], v3, s[4:5] offset:16
    s_add_u32 s6, s6, {WS_XN}
    s_addc_u32 s7, s7, 0
    s_waitcnt vmcnt(0)""")
    for r in range(8):
        a(f"v_lshlrev_b32 v{16+2*r}, 16, v{4+r}")
        a(f"v_and_b32 v{17+2*r}, 0xffff0000, v{4+r}")
    a("v_add_f32 v32, v16, v17")
    for i in range(2, 16):
        a(f"v_add_f32 v32, v32, v{16+i}")
    wave_sum_f32(a, "v32", "v33", 8)
    a("v_mul_f32 v32, 0x3a800000, v32")
    a("v_sub_f32 v34, v16, v32")
    a("v_mul_f32 v35, v34, v34")
    for i in range(1, 16):
        a(f"v_sub_f32 v34, v{16+i}, v32")
        a(f"v_fmac_f32 v35, v34, v34")
    wave_sum_f32(a, "v35", "v33", 8)
    a("v_mul_f32 v35, 0x3a800000, v35")
    round_bf16_f32(a, "v32", "v32")
    round_bf16_f32(a, "v35", "v35")
    a("v_add_f32 v35, 0x3727c5ac, v35")
    round_bf16_f32(a, "v35", "v35")
    a("v_sqrt_f32 v36, v35")
    a("s_nop 0")
    round_bf16_f32(a, "v36", "v36")
    a("v_rcp_f32 v37, v36")
    a("s_nop 0")
    for i in range(16):
        x = f"v{16+i}"
        a(f"v_sub_f32 {x}, {x}, v32")
        round_bf16_f32(a, x, x)
        a(f"v_mul_f32 v34, {x}, v37")
        a(f"v_fma_f32 v38, -v34, v36, {x}")
        a(f"v_fma_f32 {x}, v38, v37, v34")
    for r in range(8):
        a(f"v_cvt_pk_bf16_f32 v{4+r}, v{16+2*r}, v{17+2*r}")
    a("""global_store_dwordx4 v3, v[4:7], s[6:7]
    global_store_dwordx4 v3, v[8:11], s[6:7] offset:16""")
    a.label(end)
    a("s_endpgm")
    return kernel_descriptor(name, 40, 16)
```

```python
import sys
sys.path.insert(0, "gen")
from common import *
import k_ln, k_gemm1, k_att, k_gemm2

NAME = "recurrent_scan__sliding_local_dilated__glu_gated_swiglu__prompt"

def build(kernels, path):
    a = Asm()
    hdr = []
    for (name, gen, grid, block, lds) in kernels:
        hdr.append(f"; @launch kernel={name} grid=({grid},1,1) block=({block},1,1) lds={lds}")
    out = "\n".join(hdr) + "\n"
    out += '.amdgcn_target "amdgcn-amd-amdhsa--gfx950"\n.text\n'
    descs = []
    done = set()
    for (name, gen, grid, block, lds) in kernels:
        if name in done:
            continue
        done.add(name)
        descs.append(gen(a, name))
    out += a.text()
    out += '.section .rodata,"a"\n'
    for d in descs:
        out += ".p2align 6\n" + d
    open(path, "w").write(out)

def full_list():
    return [("ln_kernel", k_ln.gen_ln, 512, 256, 0),
            ("gemm1_kernel", k_gemm1.gen_gemm1, 256, 512, 163840),
            ("att_kernel", k_att.gen_att, 1024, 256, 256),
            ("gemm2_kernel", k_gemm2.gen_gemm2, 256, 512, 3*0xC000)]

if __name__ == "__main__":
    build(full_list(), sys.argv[1] if len(sys.argv) > 1 else "t2.s")
```

```python
class Asm:
    def __init__(self):
        self.lines = []
        self._lbl = 0

    def __call__(self, s=""):
        for l in s.split("\n"):
            self.lines.append("    " + l.strip() if l.strip() and not l.strip().endswith(":") else l.strip())

    def label(self, name):
        self.lines.append(name + ":")

    def newlabel(self, base):
        self._lbl += 1
        return f"L_{base}_{self._lbl}"

    def comment(self, s):
        self.lines.append("    ; " + s)

    def text(self):
        return "\n".join(self.lines) + "\n"


def vr(a, n):
    return f"v[{a}:{a+n-1}]"


def sr(a, n=2):
    return f"s[{a}:{a+n-1}]"


WS_XN = 0x0
WS_QKV = 0x400000
WS_H = 0x1000000
WS_O = 0x1E00000
WS_END = 0x2200000

KA_X, KA_WQKV, KA_WO, KA_BX, KA_W1, KA_W3, KA_W2, KA_OUT, KA_DBG, KA_WS = [8 * i for i in range(10)]


def kernel_header(a, name):
    a.lines.append(".globl " + name)
    a.lines.append(".p2align 8")
    a.lines.append(f".type {name},@function")
    a.label(name)


def kernel_descriptor(name, vgpr, sgpr, accum=None):
    accum = accum if accum is not None else ((vgpr + 3) // 4) * 4
    return f""".amdhsa_kernel {name}
  .amdhsa_next_free_vgpr {vgpr}
  .amdhsa_next_free_sgpr {sgpr}
  .amdhsa_accum_offset {accum}
  .amdhsa_group_segment_fixed_size 0
  .amdhsa_kernarg_size 80
  .amdhsa_user_sgpr_count 2
  .amdhsa_user_sgpr_kernarg_segment_ptr 1
  .amdhsa_system_sgpr_workgroup_id_x 1
.end_amdhsa_kernel
"""


def wave_sum_f32(a, v, tmp, s0):
    a(f"s_nop 1")
    for sh in (1, 2, 4, 8):
        a(f"v_add_f32 {tmp}, {v}, {v} row_shr:{sh} bound_ctrl:0")
        a(f"v_mov_b32 {v}, {tmp}")
        a(f"s_nop 1")
    for i, ln in enumerate((15, 31, 47, 63)):
        a(f"v_readlane_b32 s{s0+i}, {v}, {ln}")
    a("s_nop 1")
    a(f"v_mov_b32 {v}, s{s0}")
    a(f"v_add_f32 {v}, s{s0+1}, {v}")
    a(f"v_add_f32 {v}, s{s0+2}, {v}")
    a(f"v_add_f32 {v}, s{s0+3}, {v}")


def round_bf16_f32(a, dst, src):
    a(f"v_cvt_pk_bf16_f32 {dst}, {src}, {src}")
    a(f"v_lshlrev_b32 {dst}, 16, {dst}")


def silu4(a, src, tg, tt):
    for r in range(4):
        a(f"v_cvt_pk_bf16_f32 v{tg+r}, v{src+r}, v{src+r}")
    for r in range(4):
        a(f"v_lshlrev_b32 v{tg+r}, 16, v{tg+r}")
    for r in range(4):
        a(f"v_mul_f32 v{tt+r}, 0xbfb8aa3b, v{tg+r}")
    for r in range(4):
        a(f"v_exp_f32 v{tt+r}, v{tt+r}")
    for r in range(4):
        a(f"v_add_f32 v{tt+r}, 1.0, v{tt+r}")
    for r in range(4):
        a(f"v_rcp_f32 v{tt+r}, v{tt+r}")
    for r in range(4):
        a(f"v_mul_f32 v{tg+r}, v{tg+r}, v{tt+r}")
    for r in range(4):
        a(f"v_cvt_pk_bf16_f32 v{tg+r}, v{tg+r}, v{tg+r}")
    for r in range(4):
        a(f"v_lshlrev_b32 v{tg+r}, 16, v{tg+r}")


def rbf4(a, dst, src):
    for r in range(4):
        a(f"v_cvt_pk_bf16_f32 v{dst+r}, v{src+r}, v{src+r}")
    for r in range(4):
        a(f"v_lshlrev_b32 v{dst+r}, 16, v{dst+r}")
```

```python
from common import *


def gen_att(a, name="att_kernel"):
    kernel_header(a, name)
    early = a.newlabel("att_early")
    a(f"""s_cmp_ge_u32 s2, 1024
    s_cbranch_scc1 {early}
    s_load_dwordx2 s[4:5], s[0:1], {KA_WS}
    v_lshrrev_b32 v1, 6, v0
    v_and_b32 v2, 63, v0
    s_nop 0
    v_readfirstlane_b32 s3, v1
    s_lshr_b32 s6, s3, 1
    s_and_b32 s7, s3, 1
    s_and_b32 s9, s2, 7
    s_lshr_b32 s10, s2, 3
    s_lshl_b32 s9, s9, 7
    s_add_u32 s9, s9, s10
    s_lshl_b32 s8, s9, 1
    s_add_u32 s8, s8, s6
    s_waitcnt lgkmcnt(0)""")
    a("""s_lshl_b32 s9, s7, 10
    v_lshl_add_u32 v3, v2, 4, s9
    v_add_u32 v4, 2048, v3
    v_add_u32 v5, 4096, v3""")
    for w in range(8):
        a(f"""s_sub_i32 s{40+w}, s8, {2*w}
        s_max_i32 s10, s{40+w}, 0
        s_mul_i32 s10, s10, 6144
        s_add_u32 s10, s10, {WS_QKV}
        s_add_u32 s{16+2*w}, s4, s10
        s_addc_u32 s{17+2*w}, s5, 0""")
    a("global_load_dwordx4 v[8:11], v3, s[16:17]")
    for w in range(8):
        a(f"global_load_dwordx4 {vr(12+4*w,4)}, v4, s[{16+2*w}:{17+2*w}]")
    for w in range(8):
        a(f"global_load_dwordx4 {vr(44+4*w,4)}, v5, s[{16+2*w}:{17+2*w}]")
    for w in range(8):
        a(f"s_waitcnt vmcnt({15-w})")
        a(f"v_dot2_f32_bf16 v{76+w}, v8, v{12+4*w}, 0")
        for r in range(1, 4):
            a(f"v_dot2_f32_bf16 v{76+w}, v{8+r}, v{12+4*w+r}, v{76+w}")
    a("s_nop 1")
    for w in range(8):
        a(f"v_add_f32 v84, v{76+w}, v{76+w} quad_perm:[1,0,3,2] row_mask:0xf bank_mask:0xf")
        a("s_nop 1")
        a(f"v_add_f32 v{76+w}, v84, v84 quad_perm:[2,3,0,1] row_mask:0xf bank_mask:0xf")
        a("s_nop 1")
    for w in range(8):
        round_bf16_f32(a, f"v{76+w}", f"v{76+w}")
        a(f"v_mul_f32 v{76+w}, 0x3e3504f3, v{76+w}")
        round_bf16_f32(a, f"v{76+w}", f"v{76+w}")
    for w in range(1, 8):
        lb = a.newlabel("att_v")
        a(f"s_cmp_lt_i32 s{40+w}, 0\n s_cbranch_scc0 {lb}")
        a(f"v_mov_b32 v{76+w}, 0xce6e0000")
        a.label(lb)
    a("v_max_f32 v84, v76, v77")
    for w in range(2, 8):
        a(f"v_max_f32 v84, v84, v{76+w}")
    for w in range(8):
        a(f"v_sub_f32 v{76+w}, v{76+w}, v84")
        a(f"v_mul_f32 v{76+w}, 0x3fb8aa3b, v{76+w}")
        a(f"v_exp_f32 v{76+w}, v{76+w}")
    a("s_nop 0")
    a("v_add_f32 v85, v76, v77")
    for w in range(2, 8):
        a(f"v_add_f32 v85, v85, v{76+w}")
    a("v_rcp_f32 v86, v85")
    a("s_nop 0")
    for w in range(8):
        a(f"v_mul_f32 v87, v{76+w}, v86")
        a(f"v_fma_f32 v88, -v87, v85, v{76+w}")
        a(f"v_fma_f32 v{76+w}, v88, v86, v87")
        round_bf16_f32(a, f"v{76+w}", f"v{76+w}")
    a("s_waitcnt vmcnt(0)")
    for w in range(8):
        for r in range(4):
            src = 44 + 4 * w + r
            a(f"v_lshlrev_b32 v84, 16, v{src}")
            a(f"v_and_b32 v85, 0xffff0000, v{src}")
            if w == 0:
                a(f"v_mul_f32 v{88+2*r}, v76, v84")
                a(f"v_mul_f32 v{89+2*r}, v76, v85")
            else:
                a(f"v_fmac_f32 v{88+2*r}, v{76+w}, v84")
                a(f"v_fmac_f32 v{89+2*r}, v{76+w}, v85")
    for r in range(4):
        a(f"v_cvt_pk_bf16_f32 v{8+r}, v{88+2*r}, v{89+2*r}")
    a(f"""s_lshl_b32 s10, s8, 11
    s_add_u32 s10, s10, {WS_O}
    s_add_u32 s10, s4, s10
    s_addc_u32 s11, s5, 0
    global_store_dwordx4 v3, v[8:11], s[10:11]""")
    a.label(early)
    a("s_endpgm")
    return kernel_descriptor(name, 96, 64)
```

```python
from common import *

BUFSZ = 0xA000
LA, LQ, LG, LU = 0x0, 0x4000, 0x6000, 0x8000
NST = 32

AF = [0, 16]
BF = 32
VB = 72
VA = 82
VOA, VOQ, VOG = 83, 84, 85
T0 = 86
ACC = 96

S_A0, S_A1, S_Q, S_G, S_U = 16, 18, 20, 22, 24
S_MQ, S_MG = 26, 28
S_LA0, S_LA1, S_LQ, S_LG, S_LU = 30, 31, 32, 33, 34
S_W, S_WM, S_WN, S_RB, S_CB = 35, 36, 37, 38, 39
S_CNT = 40
S_T = 44


def acc(j, i):
    return ACC + (j * 4 + i) * 4


def dma_one(a, k, buf):
    off = buf * BUFSZ
    if k == 0:
        a(f"s_add_u32 m0, s{S_LA0}, {off}\n s_nop 0")
        a(f"global_load_lds_dwordx4 v{VOA}, {sr(S_A0)}")
    elif k == 1:
        a(f"s_add_u32 m0, s{S_LA1}, {off}\n s_nop 0")
        a(f"global_load_lds_dwordx4 v{VOA}, {sr(S_A1)}")
        a(f"v_add_u32 v{VOA}, 64, v{VOA}")
    elif k == 2:
        a(f"s_add_u32 m0, s{S_LQ}, {off}")
        a(f"s_mov_b64 exec, {sr(S_MQ)}")
        a(f"global_load_lds_dwordx4 v{VOQ}, {sr(S_Q)}")
        a(f"s_mov_b64 exec, -1")
        a(f"v_add_u32 v{VOQ}, {32*6144}, v{VOQ}")
    elif k == 3:
        a(f"s_add_u32 m0, s{S_LG}, {off}")
        a(f"s_mov_b64 exec, {sr(S_MG)}")
        a(f"global_load_lds_dwordx4 v{VOG}, {sr(S_G)}")
        a(f"s_mov_b64 exec, -1")
    elif k == 4:
        a(f"s_add_u32 m0, s{S_LU}, {off}")
        a(f"s_mov_b64 exec, {sr(S_MG)}")
        a(f"global_load_lds_dwordx4 v{VOG}, {sr(S_U)}")
        a(f"s_mov_b64 exec, -1")
        a(f"v_add_u32 v{VOG}, {32*7168}, v{VOG}")


def read_a(a, aset):
    for i in range(4):
        a(f"ds_read_b128 {vr(AF[aset]+4*i,4)}, v{VA} offset:{i*1024}")


def read_b(a, j):
    a(f"ds_read_b64_tr_b16 {vr(BF+4*j,2)}, v{VB+j}")
    a(f"ds_read_b64_tr_b16 {vr(BF+4*j+2,2)}, v{VB+j} offset:1024")


def stage(a, s_mod4, vm, do_dma, do_reads, do_barrier=True):
    cur = s_mod4 & 1
    nxt = cur ^ 1
    if do_barrier:
        a(f"s_waitcnt vmcnt({vm})")
        a("s_barrier")
    delta = BUFSZ if s_mod4 != 3 else -3 * BUFSZ
    if do_reads:
        a(f"v_add_u32 v{VA}, {delta & 0xffffffff}, v{VA}")
        read_a(a, nxt)
    for j in range(10):
        a(f"s_waitcnt lgkmcnt({14 if do_reads else min(14, 2*(9-j))})")
        for i in range(4):
            a(f"v_mfma_f32_16x16x32_bf16 {vr(acc(j,i),4)}, {vr(BF+4*j,4)}, {vr(AF[cur]+4*i,4)}, {vr(acc(j,i),4)}")
        if do_reads:
            a(f"v_add_u32 v{VB+j}, {delta & 0xffffffff}, v{VB+j}")
            read_b(a, j)
        if do_dma and j < 5:
            dma_one(a, j, (s_mod4 + 3) & 3)


def stamp(a, idx):
    a(f"s_memtime s[{64+2*idx}:{65+2*idx}]")

def gen_gemm1(a, name="gemm1_kernel", diag=False):
    kernel_header(a, name)
    if diag:
        stamp(a, 0)
    end = a.newlabel("g1_end")
    early = a.newlabel("g1_early")
    a(f"""s_cmp_ge_u32 s2, 256
    s_cbranch_scc1 {early}
    s_load_dwordx2 s[4:5], s[0:1], {KA_WQKV}
    s_load_dwordx2 s[6:7], s[0:1], {KA_W1}
    s_load_dwordx2 s[8:9], s[0:1], {KA_W3}
    s_load_dwordx2 s[10:11], s[0:1], {KA_WS}
    s_lshr_b32 s{S_RB}, s2, 5
    s_and_b32 s{S_CB}, s2, 31
    v_lshrrev_b32 v1, 6, v0
    v_and_b32 v2, 63, v0
    s_nop 0
    v_readfirstlane_b32 s{S_W}, v1
    s_and_b32 s{S_WM}, s{S_W}, 3
    s_lshr_b32 s{S_WN}, s{S_W}, 2
    """)
    a("""v_lshrrev_b32 v3, 4, v2
    v_and_b32 v4, 15, v2
    v_bfe_u32 v5, v2, 2, 2
    v_and_b32 v6, 3, v2
    v_lshrrev_b32 v7, 2, v2""")
    def fgray(dst, u, t):
        a(f"v_lshrrev_b32 {dst}, 1, {u}")
        a(f"v_xor_b32 {t}, {u}, {dst}")
        a(f"v_and_b32 {t}, 1, {t}")
        a(f"v_lshl_or_b32 {dst}, {t}, 1, {dst}")
    fgray("v8", "v3", "v9")
    a(f"""v_xor_b32 v8, v6, v8
    v_lshlrev_b32 v8, 4, v8
    v_lshl_add_u32 v{VOA}, v7, 11, v8""")
    a(f"""s_lshr_b32 s{S_T}, s{S_W}, 1
    s_and_b32 s{S_T}, s{S_T}, 1
    s_lshl_b32 s{S_T}, s{S_T}, 2
    v_or_b32 v8, s{S_T}, v3
    v_lshrrev_b32 v9, 1, v4
    v_xor_b32 v9, v9, v8
    v_and_b32 v10, 1, v4
    v_lshl_or_b32 v9, v9, 1, v10
    v_cmp_gt_u32 {sr(S_MQ)}, 12, v9
    v_cmp_gt_u32 {sr(S_MG)}, 14, v9
    v_lshlrev_b32 v9, 4, v9
    v_mul_u32_u24 v{VOQ}, 6144, v3
    v_add_u32 v{VOQ}, v{VOQ}, v9
    v_mul_u32_u24 v{VOG}, 7168, v3
    v_add_u32 v{VOG}, v{VOG}, v9""")
    fgray("v8", "v5", "v9")
    a(f"""v_xor_b32 v8, v3, v8
    v_lshlrev_b32 v8, 4, v8
    s_lshl_b32 s{S_T}, s{S_WM}, 12
    v_lshl_add_u32 v{VA}, v4, 6, v8
    v_add_u32 v{VA}, s{S_T}, v{VA}""")
    a("""v_lshl_add_u32 v8, v3, 3, v5
    v_lshlrev_b32 v8, 8, v8
    v_lshl_add_u32 v8, v6, 3, v8
    v_and_b32 v9, 1, v3
    v_lshl_or_b32 v9, v9, 2, v5""")
    for j in range(10):
        r0, s0 = (LQ, j) if j < 6 else ((LG, j - 6) if j < 8 else (LU, j - 8))
        r1, s1 = (LG, 2 + j) if j < 5 else (LU, 2 + j - 5)
        a(f"""s_cmp_eq_u32 s{S_WN}, 0
        s_cselect_b32 s{S_T}, {s0}, {s1}
        s_mov_b32 s{S_T+2}, {r1}
        s_cselect_b32 s{S_T+1}, {r0}, s{S_T+2}
        v_xor_b32 v10, s{S_T}, v9
        v_lshlrev_b32 v10, 5, v10
        v_add3_u32 v{VB+j}, v10, v8, s{S_T+1}""")
    a("s_waitcnt lgkmcnt(0)")
    a(f"""s_lshl_b32 s{S_T}, s{S_RB}, 19
    s_lshl_b32 s{S_T+1}, s{S_W}, 16
    s_add_u32 s{S_T}, s{S_T}, s{S_T+1}
    s_add_u32 s{S_T}, s{S_T}, {WS_XN}
    s_add_u32 s{S_A0}, s10, s{S_T}
    s_addc_u32 s{S_A0+1}, s11, 0
    s_add_u32 s{S_A1}, s{S_A0}, 32768
    s_addc_u32 s{S_A1+1}, s{S_A0+1}, 0""")
    a(f"""s_mul_i32 s{S_T}, s{S_W}, {4*6144}
    s_mul_i32 s{S_T+1}, s{S_CB}, 192
    s_add_u32 s{S_T}, s{S_T}, s{S_T+1}
    s_add_u32 s{S_Q}, s4, s{S_T}
    s_addc_u32 s{S_Q+1}, s5, 0
    s_mul_i32 s{S_T}, s{S_W}, {4*7168}
    s_mul_i32 s{S_T+1}, s{S_CB}, 224
    s_add_u32 s{S_T}, s{S_T}, s{S_T+1}
    s_add_u32 s{S_G}, s6, s{S_T}
    s_addc_u32 s{S_G+1}, s7, 0
    s_add_u32 s{S_U}, s8, s{S_T}
    s_addc_u32 s{S_U+1}, s9, 0""")
    a(f"""s_lshl_b32 s{S_LA0}, s{S_W}, 11
    s_add_u32 s{S_LA1}, s{S_LA0}, 1024
    s_lshl_b32 s{S_T}, s{S_W}, 10
    s_add_u32 s{S_LQ}, s{S_T}, {LQ}
    s_add_u32 s{S_LG}, s{S_T}, {LG}
    s_add_u32 s{S_LU}, s{S_T}, {LU}""")
    for st in range(3):
        for k in range(5):
            dma_one(a, k, st)
    for r in range(160):
        a(f"v_mov_b32 v{ACC+r}, 0")
    if diag:
        stamp(a, 1)
    a("s_waitcnt vmcnt(10)")
    a("s_barrier")
    if diag:
        stamp(a, 2)
    read_a(a, 0)
    for j in range(10):
        if j in (5,):
            a("s_waitcnt lgkmcnt(4)")
        read_b(a, j)
    loop = a.newlabel("g1_loop")
    a(f"s_mov_b32 s{S_CNT}, 7")
    a.label(loop)
    for u in range(4):
        stage(a, u, 5, True, True)
    a(f"""s_sub_u32 s{S_CNT}, s{S_CNT}, 1
    s_cmp_lg_u32 s{S_CNT}, 0
    s_cbranch_scc1 {loop}""")
    stage(a, 0, 5, True, True)
    stage(a, 1, 5, False, True)
    stage(a, 2, 0, False, True)
    stage(a, 3, 0, False, False, do_barrier=False)
    a("s_nop 15")
    if diag:
        stamp(a, 3)
    a("""v_mbcnt_lo_u32_b32 v2, -1, 0
    v_mbcnt_hi_u32_b32 v2, -1, v2
    v_lshrrev_b32 v3, 4, v2
    v_and_b32 v4, 15, v2""")
    a(f"""s_lshl_b32 s{S_T}, s{S_RB}, 8
    s_lshl_b32 s{S_T+1}, s{S_WM}, 6
    s_add_u32 s{S_T}, s{S_T}, s{S_T+1}
    v_add_u32 v5, s{S_T}, v4""")
    wn1 = a.newlabel("g1_ep_wn1")
    st2 = a.newlabel("g1_ep_st")
    QST, HST = 0, 49152
    a("s_barrier")
    a(f"""s_lshl_b32 s{S_T}, s{S_WM}, 6
    v_add_u32 v7, s{S_T}, v4""")
    a(f"s_cmp_eq_u32 s{S_WN}, 1\n s_cbranch_scc1 {wn1}")

    def stage_qkv(jlist):
        a(f"""v_mul_u32_u24 v6, 192, v7
        v_lshl_add_u32 v6, v3, 3, v6""")
        for i in range(4):
            for j in jlist:
                b = acc(j, i)
                a(f"v_cvt_pk_bf16_f32 v8, v{b}, v{b+1}")
                a(f"v_cvt_pk_bf16_f32 v9, v{b+2}, v{b+3}")
                a(f"ds_write_b64 v6, v[8:9] offset:{QST + i*16*192 + j*32}")

    def stage_h(pairs):
        a(f"""v_mul_u32_u24 v6, 224, v7
        v_lshl_add_u32 v6, v3, 3, v6""")
        for i in range(4):
            for (jg, ju, slot) in pairs:
                g0, u0 = acc(jg, i), acc(ju, i)
                silu4(a, g0, 16, 20)
                rbf4(a, 24, u0)
                for r in range(4):
                    a(f"v_mul_f32 v{12+r}, v{16+r}, v{24+r}")
                a("v_cvt_pk_bf16_f32 v8, v12, v13")
                a("v_cvt_pk_bf16_f32 v9, v14, v15")
                a(f"ds_write_b64 v6, v[8:9] offset:{HST + i*16*224 + slot*32}")

    stage_qkv(range(6))
    stage_h([(6, 8, 0), (7, 9, 1)])
    a(f"s_branch {st2}")
    a.label(wn1)
    stage_h([(jj, 5 + jj, 2 + jj) for jj in range(5)])
    a.label(st2)
    a("s_waitcnt lgkmcnt(0)")
    a("s_barrier")
    a(f"""s_lshl_b32 s{S_T}, s{S_RB}, 8
    s_lshl_b32 s{S_T+1}, s{S_W}, 5
    s_add_u32 s{S_T+2}, s{S_T}, s{S_T+1}
    s_mul_i32 s{S_T+3}, s{S_CB}, 192
    s_add_u32 s{S_T+3}, s{S_T+3}, {WS_QKV}
    s_mul_i32 s{S_T+4}, s{S_CB}, 224
    s_add_u32 s{S_T+4}, s{S_T+4}, {WS_H}""")
    nld = 0
    for (nch, magic, ninst, base, gstride, soff, rb_) in ((12, 5462, 6, QST, 6144, S_T+3, 192), (14, 4682, 7, HST, 7168, S_T+4, 224)):
        for t in range(ninst):
            a(f"""v_add_u32 v10, {t*64}, v2
            v_mul_u32_u24 v11, {magic}, v10
            v_lshrrev_b32 v11, 16, v11
            v_mul_u32_u24 v12, {nch}, v11
            v_sub_u32 v12, v10, v12
            v_add_u32 v13, s{S_T+1}, v11
            v_mul_u32_u24 v14, {rb_}, v13
            v_lshl_add_u32 v14, v12, 4, v14
            ds_read_b128 {vr(32+4*nld,4)}, v14 offset:{base}
            v_add_u32 v13, s{S_T+2}, v11
            v_mul_u32_u24 v13, {gstride}, v13
            v_lshl_add_u32 v13, v12, 4, v13
            v_add_u32 v{88+nld}, s{soff}, v13""")
            nld += 1
    for k in range(nld):
        a(f"s_waitcnt lgkmcnt({nld-1-k})")
        a(f"global_store_dwordx4 v{88+k}, {vr(32+4*k,4)}, s[10:11]")
    a.label(end)
    if diag:
        a("s_waitcnt vmcnt(0)")
        stamp(a, 4)
        a("s_waitcnt lgkmcnt(0)")
        a(f"s_lshl_b32 s{S_T}, s2, 3\n s_add_u32 s{S_T}, s{S_T}, s{S_W}\n s_lshl_b32 s{S_T}, s{S_T}, 6\n s_add_u32 s{S_T}, s{S_T}, 0x4000000")
        a(f"v_mov_b32 v2, s{S_T}")
        for i in range(10):
            a(f"v_mov_b32 v3, s{64+i}")
            a(f"global_store_dword v2, v3, s[10:11] offset:{4*i}")
    a("s_endpgm")
    a.label(early)
    a("s_endpgm")
    return kernel_descriptor(name, 256, 80)
```

```python
from common import *

BUFSZ = 0xC000
LA, LB = 0x0, 0x8000

AFR = [0, 16]
BFR = [32, 40]
VBR = 49
VT = 58
ACC_S = 64
ACC_F = 96
VOA = 52
VOB = 56

S_A, S_B = 16, 18
S_W, S_WM, S_WN, S_RB, S_CB = 20, 21, 22, 23, 24
S_LAW, S_LBW = 25, 26
S_CNT = 27
S_T = 28
S_SA = 32
S_AB = 36


def accr(base, i, jj):
    return base + (jj * 4 + i) * 4


def dma_stage(a, buf):
    off = buf * BUFSZ
    for e in range(8):
        a(f"s_mul_i32 s{S_T}, s{S_SA}, {4*e}")
        a(f"s_add_u32 s{S_AB}, s{S_A}, s{S_T}")
        a(f"s_addc_u32 s{S_AB+1}, s{S_A+1}, 0")
        a(f"s_add_u32 m0, s{S_LAW}, {off + LA + e*1024}")
        a("s_nop 0")
        a(f"global_load_lds_dwordx4 v{VOA + (e & 3)}, {sr(S_AB)}")
    for e in range(4):
        a(f"s_add_u32 s{S_AB}, s{S_B}, {8*e*2048}")
        a(f"s_addc_u32 s{S_AB+1}, s{S_B+1}, 0")
        a(f"s_add_u32 m0, s{S_LBW}, {off + LB + e*1024}")
        a("s_nop 0")
        a(f"global_load_lds_dwordx4 v{VOB + (e & 1)}, {sr(S_AB)}")
    a(f"s_add_u32 s{S_A}, s{S_A}, 256\n s_addc_u32 s{S_A+1}, s{S_A+1}, 0")
    a(f"s_add_u32 s{S_B}, s{S_B}, {128*2048}\n s_addc_u32 s{S_B+1}, s{S_B+1}, 0")


def read_frags(a, st, t):
    for i in range(4):
        a(f"ds_read_b128 {vr(AFR[st]+4*i,4)}, v{VT + t} offset:{LA + i*4096}")
    for jj in range(2):
        a(f"ds_read_b64_tr_b16 {vr(BFR[st]+4*jj,2)}, v{VBR+jj} offset:{LB + t*4096}")
        a(f"ds_read_b64_tr_b16 {vr(BFR[st]+4*jj+2,2)}, v{VBR+jj} offset:{LB + t*4096 + 512}")


DIAG = False
def tick(a, acc):
    a("s_memtime s[72:73]")
    a("s_waitcnt lgkmcnt(0)")
    a(f"s_sub_u32 s74, s72, s70")
    a(f"s_add_u32 s{acc}, s{acc}, s74")
    a("s_mov_b32 s70, s72")


def lstage(a, buf, vm, dma):
    a("s_barrier")
    if DIAG: tick(a, 64)
    if dma:
        dma_stage(a, (buf + 2) % 3)
    if DIAG: tick(a, 65)
    a(f"s_waitcnt vmcnt({vm})")
    if DIAG: tick(a, 66)


def cstage(a, buf, accbase):
    a("s_barrier")
    read_frags(a, 0, 0)
    for t in range(4):
        st = t & 1
        if t < 3:
            read_frags(a, st ^ 1, t + 1)
            a("s_waitcnt lgkmcnt(8)")
        else:
            a("s_waitcnt lgkmcnt(0)")
        for jj in range(2):
            for i in range(4):
                r = accr(accbase, i, jj)
                a(f"v_mfma_f32_16x16x32_bf16 {vr(r,4)}, {vr(BFR[st]+4*jj,4)}, {vr(AFR[st]+4*i,4)}, {vr(r,4)}")
        if t == 2:
            delta = BUFSZ if buf != 2 else -2 * BUFSZ
            for rr in [VT, VT + 1, VT + 2, VT + 3, VBR, VBR + 1]:
                a(f"v_add_u32 v{rr}, {delta & 0xffffffff}, v{rr}")


def gen_gemm2(a, name="gemm2_kernel"):
    kernel_header(a, name)
    early = a.newlabel("g2_early")
    loader = a.newlabel("g2_loader")
    a(f"""s_cmp_ge_u32 s2, 256
    s_cbranch_scc1 {early}
    s_load_dwordx2 s[4:5], s[0:1], {KA_WO}
    s_load_dwordx2 s[6:7], s[0:1], {KA_W2}
    s_load_dwordx2 s[8:9], s[0:1], {KA_X}
    s_load_dwordx2 s[10:11], s[0:1], {KA_WS}
    s_load_dwordx2 s[12:13], s[0:1], {KA_OUT}
"""); xcd_dequeue(a, 32, "s3", early, 0); a(f"""s_and_b32 s{S_T+1}, s3, 31
    s_lshr_b32 s{S_T}, s3, 5
    s_lshr_b32 s{S_RB}, s{S_T}, 1
    s_lshl_b32 s{S_RB}, s{S_RB}, 2
    s_lshr_b32 s{S_T+2}, s{S_T+1}, 3
    s_add_u32 s{S_RB}, s{S_RB}, s{S_T+2}
    s_and_b32 s{S_CB}, s{S_T}, 1
    s_lshl_b32 s{S_CB}, s{S_CB}, 3
    s_and_b32 s{S_T+2}, s{S_T+1}, 7
    s_add_u32 s{S_CB}, s{S_CB}, s{S_T+2}
    v_lshrrev_b32 v1, 6, v0
    v_and_b32 v2, 63, v0
    s_nop 0
    v_readfirstlane_b32 s{S_W}, v1
    s_cmp_ge_u32 s{S_W}, 4
    s_cbranch_scc1 {loader}""")
    a(f"""s_and_b32 s{S_WM}, s{S_W}, 1
    s_lshr_b32 s{S_WN}, s{S_W}, 1
    v_lshrrev_b32 v3, 4, v2
    v_and_b32 v4, 15, v2
    v_bfe_u32 v5, v2, 2, 2
    v_and_b32 v6, 3, v2""")
    a(f"""v_xor_b32 v9, v3, v4
    v_lshlrev_b32 v9, 4, v9
    v_lshl_add_u32 v9, v4, 8, v9
    s_lshl_b32 s{S_T}, s{S_WM}, 14
    v_add_u32 v{VT}, s{S_T}, v9""")
    for t in range(1, 4):
        a(f"v_xor_b32 v{VT+t}, {t << 6}, v{VT}")
    a(f"""v_lshl_add_u32 v9, v3, 3, v5
    v_lshlrev_b32 v9, 7, v9
    v_lshl_add_u32 v9, v6, 3, v9
    v_lshrrev_b32 v10, 1, v5
    v_and_b32 v11, 1, v3
    v_lshl_or_b32 v10, v11, 1, v10
    s_lshl_b32 s{S_T}, s{S_WN}, 1""")
    for jj in range(2):
        a(f"""s_add_u32 s{S_T+1}, s{S_T}, {jj}
        v_xor_b32 v11, s{S_T+1}, v10
        v_lshl_add_u32 v{VBR+jj}, v11, 5, v9""")
    for r in range(64):
        a(f"v_mov_b32 v{ACC_S+r}, 0")
    a("s_waitcnt lgkmcnt(0)")
    loop = a.newlabel("g2_ca")
    a(f"s_mov_b32 s{S_CNT}, 2")
    a.label(loop)
    for b in range(3):
        cstage(a, b, ACC_S)
    a(f"s_sub_u32 s{S_CNT}, s{S_CNT}, 1\n s_cmp_lg_u32 s{S_CNT}, 0\n s_cbranch_scc1 {loop}")
    cstage(a, 0, ACC_S)
    cstage(a, 1, ACC_S)
    cstage(a, 2, ACC_F)
    loop = a.newlabel("g2_cc")
    a(f"s_mov_b32 s{S_CNT}, 9")
    a.label(loop)
    for b in range(3):
        cstage(a, b, ACC_F)
    a(f"s_sub_u32 s{S_CNT}, s{S_CNT}, 1\n s_cmp_lg_u32 s{S_CNT}, 0\n s_cbranch_scc1 {loop}")
    a("s_nop 15")
    a("""v_mbcnt_lo_u32_b32 v2, -1, 0
    v_mbcnt_hi_u32_b32 v2, -1, v2
    v_lshrrev_b32 v3, 4, v2
    v_and_b32 v4, 15, v2""")
    a(f"""s_lshl_b32 s{S_T}, s{S_RB}, 7
    s_lshl_b32 s{S_T+1}, s{S_WM}, 6
    s_add_u32 s{S_T}, s{S_T}, s{S_T+1}
    v_add_u32 v5, s{S_T}, v4
    v_lshlrev_b32 v5, 11, v5
    v_lshl_add_u32 v5, v3, 3, v5
    s_lshl_b32 s{S_T}, s{S_CB}, 7
    s_lshl_b32 s{S_T+1}, s{S_WN}, 6
    s_add_u32 s{S_T}, s{S_T}, s{S_T+1}
    v_add_u32 v5, s{S_T}, v5""")
    for i in range(4):
        a(f"v_add_u32 v6, {i*16*2048}, v5")
        for jj in range(2):
            b = jj * 4 + i
            a(f"global_load_dwordx2 {vr(8+2*b,2)}, v6, s[8:9] offset:{jj*32}")
    for i in range(4):
        a(f"v_add_u32 v6, {i*16*2048}, v5")
        for jj in range(2):
            b = jj * 4 + i
            sR, fR = accr(ACC_S, i, jj), accr(ACC_F, i, jj)
            a(f"s_waitcnt vmcnt({7 - (i*2+jj)})")
            silu4(a, fR, 32, 36)
            rbf4(a, 40, sR)
            for r in range(4):
                a(f"v_mul_f32 v{32+r}, v{32+r}, v{40+r}")
            rbf4(a, 32, 32)
            for r in range(4):
                xs = 8 + 2 * b + (r >> 1)
                if r & 1:
                    a(f"v_and_b32 v{40+r}, 0xffff0000, v{xs}")
                else:
                    a(f"v_lshlrev_b32 v{40+r}, 16, v{xs}")
            for r in range(4):
                a(f"v_add_f32 v{28+r}, v{32+r}, v{40+r}")
            a("v_cvt_pk_bf16_f32 v26, v28, v29")
            a("v_cvt_pk_bf16_f32 v27, v30, v31")
            a(f"global_store_dwordx2 v6, v[26:27], s[12:13] offset:{jj*32}")
            a("s_nop 1")
    a("s_endpgm")
    a.label(loader)
    a(f"""s_sub_u32 s{S_W}, s{S_W}, 4
    v_lshrrev_b32 v3, 4, v2
    v_and_b32 v4, 15, v2
    v_lshrrev_b32 v7, 3, v2
    v_and_b32 v8, 7, v2""")
    for e in range(2):
        a(f"""v_and_b32 v9, 1, v3
        v_or_b32 v9, {e << 1}, v9
        v_lshrrev_b32 v10, 1, v8
        v_xor_b32 v10, v10, v9
        v_and_b32 v11, 1, v8
        v_lshl_or_b32 v10, v10, 1, v11
        v_lshlrev_b32 v10, 4, v10
        v_lshl_add_u32 v{VOB+e}, v7, 11, v10""")
    a("s_waitcnt lgkmcnt(0)")
    a(f"""s_lshl_b32 s{S_LAW}, s{S_W}, 13
    s_lshl_b32 s{S_LBW}, s{S_W}, 12""")

    def set_src(first):
        stride = 2048 if first else 7168
        a(f"s_mov_b32 s{S_SA}, {stride}")
        for q in range(4):
            a(f"""v_or_b32 v9, {4*q}, v3
            v_xor_b32 v9, v4, v9
            v_lshlrev_b32 v9, 4, v9
            v_mul_u32_u24 v10, {stride}, v3
            v_add_u32 v{VOA+q}, v9, v10""")
        a(f"""s_lshl_b32 s{S_T}, s{S_RB}, 7
        s_lshl_b32 s{S_T+1}, s{S_W}, 5
        s_add_u32 s{S_T}, s{S_T}, s{S_T+1}
        s_mul_i32 s{S_T}, s{S_T}, {stride}
        s_add_u32 s{S_T}, s{S_T}, {WS_O if first else WS_H}
        s_add_u32 s{S_A}, s10, s{S_T}
        s_addc_u32 s{S_A+1}, s11, 0""")
        a(f"""s_lshl_b32 s{S_T}, s{S_W}, 16
        s_lshl_b32 s{S_T+1}, s{S_CB}, 7
        s_add_u32 s{S_T}, s{S_T}, s{S_T+1}
        s_add_u32 s{S_B}, s{4 if first else 6}, s{S_T}
        s_addc_u32 s{S_B+1}, s{5 if first else 7}, 0""")

    if DIAG:
        a("s_mov_b32 s64, 0\n s_mov_b32 s65, 0\n s_mov_b32 s66, 0\n s_memtime s[70:71]\n s_waitcnt lgkmcnt(0)")
    set_src(True)
    dma_stage(a, 0)
    dma_stage(a, 1)
    a("s_waitcnt vmcnt(12)")
    loop = a.newlabel("g2_la")
    a(f"s_mov_b32 s{S_CNT}, 2")
    a.label(loop)
    for b in range(3):
        lstage(a, b, 12, True)
    a(f"s_sub_u32 s{S_CNT}, s{S_CNT}, 1\n s_cmp_lg_u32 s{S_CNT}, 0\n s_cbranch_scc1 {loop}")
    set_src(False)
    for b in range(3):
        lstage(a, b, 12, True)
    loop = a.newlabel("g2_lc")
    a(f"s_mov_b32 s{S_CNT}, 8")
    a.label(loop)
    for b in range(3):
        lstage(a, b, 12, True)
    a(f"s_sub_u32 s{S_CNT}, s{S_CNT}, 1\n s_cmp_lg_u32 s{S_CNT}, 0\n s_cbranch_scc1 {loop}")
    lstage(a, 0, 12, True)
    lstage(a, 1, 0, False)
    lstage(a, 2, 0, False)
    if DIAG:
        a(f"s_lshl_b32 s{S_T}, s2, 2\n s_add_u32 s{S_T}, s{S_T}, s{S_W}\n s_lshl_b32 s{S_T}, s{S_T}, 4\n s_add_u32 s{S_T}, s{S_T}, 0x4000000")
        a(f"v_mov_b32 v2, s{S_T}")
        for i in range(3):
            a(f"v_mov_b32 v3, s{64+i}")
            a(f"global_store_dword v2, v3, s[10:11] offset:{4*i}")
    a.label(early)
    a("s_endpgm")
    return kernel_descriptor(name, 128, 80)
```

```python
from common import *


def gen_att(a, name="att_kernel"):
    kernel_header(a, name)
    early = a.newlabel("att_early")
    a(f"""s_cmp_ge_u32 s2, 1024
    s_cbranch_scc1 {early}
    s_load_dwordx2 s[4:5], s[0:1], {KA_WS}
    v_lshrrev_b32 v1, 6, v0
    v_and_b32 v2, 63, v0
    s_nop 0
    v_readfirstlane_b32 s3, v1
    s_lshr_b32 s6, s3, 1
    s_and_b32 s7, s3, 1
    s_and_b32 s9, s2, 7
    s_lshr_b32 s10, s2, 3
    s_lshl_b32 s9, s9, 7
    s_add_u32 s9, s9, s10
    s_lshl_b32 s8, s9, 1
    s_add_u32 s8, s8, s6
    s_load_dwordx2 s[60:61], s[0:1], {KA_W2}
    s_load_dwordx2 s[62:63], s[0:1], {KA_WO}
    s_waitcnt lgkmcnt(0)""")
    a("""s_lshl_b32 s9, s7, 10
    v_lshl_add_u32 v3, v2, 4, s9
    v_add_u32 v4, 2048, v3
    v_add_u32 v5, 4096, v3""")
    for w in range(8):
        a(f"""s_sub_i32 s{40+w}, s8, {2*w}
        s_max_i32 s10, s{40+w}, 0
        s_mul_i32 s10, s10, 6144
        s_add_u32 s10, s10, {WS_QKV}
        s_add_u32 s{16+2*w}, s4, s10
        s_addc_u32 s{17+2*w}, s5, 0""")
    a("global_load_dwordx4 v[8:11], v3, s[16:17]")
    for w in range(8):
        a(f"global_load_dwordx4 {vr(12+4*w,4)}, v4, s[{16+2*w}:{17+2*w}]")
    for w in range(8):
        a(f"global_load_dwordx4 {vr(44+4*w,4)}, v5, s[{16+2*w}:{17+2*w}]")
    for w in range(8):
        a(f"s_waitcnt vmcnt({15-w})")
        a(f"v_dot2_f32_bf16 v{76+w}, v8, v{12+4*w}, 0")
        for r in range(1, 4):
            a(f"v_dot2_f32_bf16 v{76+w}, v{8+r}, v{12+4*w+r}, v{76+w}")
    a("s_nop 1")
    for w in range(8):
        a(f"v_add_f32 v84, v{76+w}, v{76+w} quad_perm:[1,0,3,2] row_mask:0xf bank_mask:0xf")
        a("s_nop 1")
        a(f"v_add_f32 v{76+w}, v84, v84 quad_perm:[2,3,0,1] row_mask:0xf bank_mask:0xf")
        a("s_nop 1")
    for w in range(8):
        round_bf16_f32(a, f"v{76+w}", f"v{76+w}")
        a(f"v_mul_f32 v{76+w}, 0x3e3504f3, v{76+w}")
        round_bf16_f32(a, f"v{76+w}", f"v{76+w}")
    for w in range(1, 8):
        lb = a.newlabel("att_v")
        a(f"s_cmp_lt_i32 s{40+w}, 0\n s_cbranch_scc0 {lb}")
        a(f"v_mov_b32 v{76+w}, 0xce6e0000")
        a.label(lb)
    a("v_max_f32 v84, v76, v77")
    for w in range(2, 8):
        a(f"v_max_f32 v84, v84, v{76+w}")
    for w in range(8):
        a(f"v_sub_f32 v{76+w}, v{76+w}, v84")
        a(f"v_mul_f32 v{76+w}, 0x3fb8aa3b, v{76+w}")
        a(f"v_exp_f32 v{76+w}, v{76+w}")
    a("s_nop 0")
    a("v_add_f32 v85, v76, v77")
    for w in range(2, 8):
        a(f"v_add_f32 v85, v85, v{76+w}")
    a("v_rcp_f32 v86, v85")
    a("s_nop 0")
    for w in range(8):
        a(f"v_mul_f32 v87, v{76+w}, v86")
        a(f"v_fma_f32 v88, -v87, v85, v{76+w}")
        a(f"v_fma_f32 v{76+w}, v88, v86, v87")
        round_bf16_f32(a, f"v{76+w}", f"v{76+w}")
    a("s_waitcnt vmcnt(0)")
    for w in range(8):
        for r in range(4):
            src = 44 + 4 * w + r
            a(f"v_lshlrev_b32 v84, 16, v{src}")
            a(f"v_and_b32 v85, 0xffff0000, v{src}")
            if w == 0:
                a(f"v_mul_f32 v{88+2*r}, v76, v84")
                a(f"v_mul_f32 v{89+2*r}, v76, v85")
            else:
                a(f"v_fmac_f32 v{88+2*r}, v{76+w}, v84")
                a(f"v_fmac_f32 v{89+2*r}, v{76+w}, v85")
    for r in range(4):
        a(f"v_cvt_pk_bf16_f32 v{8+r}, v{88+2*r}, v{89+2*r}")
    a(f"""s_lshl_b32 s10, s8, 11
    s_add_u32 s10, s10, {WS_O}
    s_add_u32 s10, s4, s10
    s_addc_u32 s11, s5, 0
    global_store_dwordx4 v3, v[8:11], s[10:11]""")
    a("""s_mul_i32 s12, s2, 7168
    s_lshl_b32 s13, s2, 11
    v_lshlrev_b32 v90, 4, v0
    v_add_u32 v91, s12, v90
    v_add_u32 v92, s13, v90
    v_cmp_gt_u32 vcc, 192, v0
    global_load_dwordx4 v[96:99], v91, s[60:61]
    s_and_saveexec_b64 s[14:15], vcc
    v_add_u32 v93, 4096, v91
    global_load_dwordx4 v[100:103], v93, s[60:61]
    v_cmp_gt_u32 vcc, 128, v0
    s_and_b64 exec, exec, vcc
    global_load_dwordx4 v[104:107], v92, s[62:63]
    s_mov_b64 exec, s[14:15]""")
    a.label(early)
    a("s_endpgm")
    return kernel_descriptor(name, 108, 64)
```

```python
from common import *

BUFSZ = 0xA000
LA, LQ, LG, LU = 0x0, 0x4000, 0x6000, 0x8000
NST = 32

AF = [0, 16]
BF = 32
VB = 72
VA = 82
VOA, VOQ, VOG = 83, 84, 85
T0 = 86
ACC = 96

S_A0, S_A1, S_Q, S_G, S_U = 16, 18, 20, 22, 24
S_MQ, S_MG = 26, 28
S_LA0, S_LA1, S_LQ, S_LG, S_LU = 30, 31, 32, 33, 34
S_W, S_WM, S_WN, S_RB, S_CB = 35, 36, 37, 38, 39
S_CNT = 40
S_T = 44


def acc(j, i):
    return ACC + (j * 4 + i) * 4


def dma_one(a, k, buf):
    off = buf * BUFSZ
    if k == 0:
        a(f"s_add_u32 m0, s{S_LA0}, {off}\n s_nop 0")
        a(f"global_load_lds_dwordx4 v{VOA}, {sr(S_A0)}")
    elif k == 1:
        a(f"s_add_u32 m0, s{S_LA1}, {off}\n s_nop 0")
        a(f"global_load_lds_dwordx4 v{VOA}, {sr(S_A1)}")
        a(f"v_add_u32 v{VOA}, 64, v{VOA}")
    elif k == 2:
        a(f"s_add_u32 m0, s{S_LQ}, {off}")
        a(f"s_mov_b64 exec, {sr(S_MQ)}")
        a(f"global_load_lds_dwordx4 v{VOQ}, {sr(S_Q)}")
        a(f"s_mov_b64 exec, -1")
        a(f"v_add_u32 v{VOQ}, {32*6144}, v{VOQ}")
    elif k == 3:
        a(f"s_add_u32 m0, s{S_LG}, {off}")
        a(f"s_mov_b64 exec, {sr(S_MG)}")
        a(f"global_load_lds_dwordx4 v{VOG}, {sr(S_G)}")
        a(f"s_mov_b64 exec, -1")
    elif k == 4:
        a(f"s_add_u32 m0, s{S_LU}, {off}")
        a(f"s_mov_b64 exec, {sr(S_MG)}")
        a(f"global_load_lds_dwordx4 v{VOG}, {sr(S_U)}")
        a(f"s_mov_b64 exec, -1")
        a(f"v_add_u32 v{VOG}, {32*7168}, v{VOG}")


def read_a(a, aset):
    for i in range(4):
        a(f"ds_read_b128 {vr(AF[aset]+4*i,4)}, v{VA} offset:{i*1024}")


def read_b(a, j):
    a(f"ds_read_b64_tr_b16 {vr(BF+4*j,2)}, v{VB+j}")
    a(f"ds_read_b64_tr_b16 {vr(BF+4*j+2,2)}, v{VB+j} offset:1024")


def stage(a, s_mod4, vm, do_dma, do_reads, do_barrier=True):
    cur = s_mod4 & 1
    nxt = cur ^ 1
    if do_barrier:
        a(f"s_waitcnt vmcnt({vm})")
        a("s_barrier")
    delta = BUFSZ if s_mod4 != 3 else -3 * BUFSZ
    if do_reads:
        a(f"v_add_u32 v{VA}, {delta & 0xffffffff}, v{VA}")
        read_a(a, nxt)
    for j in range(10):
        a(f"s_waitcnt lgkmcnt({14 if do_reads else min(14, 2*(9-j))})")
        for i in range(4):
            a(f"v_mfma_f32_16x16x32_bf16 {vr(acc(j,i),4)}, {vr(BF+4*j,4)}, {vr(AF[cur]+4*i,4)}, {vr(acc(j,i),4)}")
        if do_reads:
            a(f"v_add_u32 v{VB+j}, {delta & 0xffffffff}, v{VB+j}")
            read_b(a, j)
        if do_dma and j < 5:
            dma_one(a, j, (s_mod4 + 3) & 3)


def stamp(a, idx):
    a(f"s_memtime s[{64+2*idx}:{65+2*idx}]")

def gen_gemm1(a, name="gemm1_kernel", diag=False):
    kernel_header(a, name)
    if diag:
        stamp(a, 0)
        a("s_memrealtime s[76:77]")
    end = a.newlabel("g1_end")
    early = a.newlabel("g1_early")
    a(f"""s_cmp_ge_u32 s2, 256
    s_cbranch_scc1 {early}
    s_load_dwordx2 s[4:5], s[0:1], {KA_WQKV}
    s_load_dwordx2 s[6:7], s[0:1], {KA_W1}
    s_load_dwordx2 s[8:9], s[0:1], {KA_W3}
    s_load_dwordx2 s[10:11], s[0:1], {KA_WS}
    s_lshr_b32 s{S_RB}, s2, 5
    s_and_b32 s{S_CB}, s2, 31
    v_lshrrev_b32 v1, 6, v0
    v_and_b32 v2, 63, v0
    s_nop 0
    v_readfirstlane_b32 s{S_W}, v1
    s_and_b32 s{S_WM}, s{S_W}, 3
    s_lshr_b32 s{S_WN}, s{S_W}, 2
    """)
    a("""v_lshrrev_b32 v3, 4, v2
    v_and_b32 v4, 15, v2
    v_bfe_u32 v5, v2, 2, 2
    v_and_b32 v6, 3, v2
    v_lshrrev_b32 v7, 2, v2""")
    def fgray(dst, u, t):
        a(f"v_lshrrev_b32 {dst}, 1, {u}")
        a(f"v_xor_b32 {t}, {u}, {dst}")
        a(f"v_and_b32 {t}, 1, {t}")
        a(f"v_lshl_or_b32 {dst}, {t}, 1, {dst}")
    fgray("v8", "v3", "v9")
    a(f"""v_xor_b32 v8, v6, v8
    v_lshlrev_b32 v8, 4, v8
    v_lshl_add_u32 v{VOA}, v7, 11, v8""")
    a(f"""s_lshr_b32 s{S_T}, s{S_W}, 1
    s_and_b32 s{S_T}, s{S_T}, 1
    s_lshl_b32 s{S_T}, s{S_T}, 2
    v_or_b32 v8, s{S_T}, v3
    v_lshrrev_b32 v9, 1, v4
    v_xor_b32 v9, v9, v8
    v_and_b32 v10, 1, v4
    v_lshl_or_b32 v9, v9, 1, v10
    v_cmp_gt_u32 {sr(S_MQ)}, 12, v9
    v_cmp_gt_u32 {sr(S_MG)}, 14, v9
    v_lshlrev_b32 v9, 4, v9
    v_mul_u32_u24 v{VOQ}, 6144, v3
    v_add_u32 v{VOQ}, v{VOQ}, v9
    v_mul_u32_u24 v{VOG}, 7168, v3
    v_add_u32 v{VOG}, v{VOG}, v9""")
    fgray("v8", "v5", "v9")
    a(f"""v_xor_b32 v8, v3, v8
    v_lshlrev_b32 v8, 4, v8
    s_lshl_b32 s{S_T}, s{S_WM}, 12
    v_lshl_add_u32 v{VA}, v4, 6, v8
    v_add_u32 v{VA}, s{S_T}, v{VA}""")
    a("""v_lshl_add_u32 v8, v3, 3, v5
    v_lshlrev_b32 v8, 8, v8
    v_lshl_add_u32 v8, v6, 3, v8
    v_and_b32 v9, 1, v3
    v_lshl_or_b32 v9, v9, 2, v5""")
    for j in range(10):
        r0, s0 = (LQ, j) if j < 6 else ((LG, j - 6) if j < 8 else (LU, j - 8))
        r1, s1 = (LG, 2 + j) if j < 5 else (LU, 2 + j - 5)
        a(f"""s_cmp_eq_u32 s{S_WN}, 0
        s_cselect_b32 s{S_T}, {s0}, {s1}
        s_mov_b32 s{S_T+2}, {r1}
        s_cselect_b32 s{S_T+1}, {r0}, s{S_T+2}
        v_xor_b32 v10, s{S_T}, v9
        v_lshlrev_b32 v10, 5, v10
        v_add3_u32 v{VB+j}, v10, v8, s{S_T+1}""")
    a("s_waitcnt lgkmcnt(0)")
    a(f"""s_lshl_b32 s{S_T}, s{S_RB}, 19
    s_lshl_b32 s{S_T+1}, s{S_W}, 16
    s_add_u32 s{S_T}, s{S_T}, s{S_T+1}
    s_add_u32 s{S_T}, s{S_T}, {WS_XN}
    s_add_u32 s{S_A0}, s10, s{S_T}
    s_addc_u32 s{S_A0+1}, s11, 0
    s_add_u32 s{S_A1}, s{S_A0}, 32768
    s_addc_u32 s{S_A1+1}, s{S_A0+1}, 0""")
    a(f"""s_mul_i32 s{S_T}, s{S_W}, {4*6144}
    s_mul_i32 s{S_T+1}, s{S_CB}, 192
    s_add_u32 s{S_T}, s{S_T}, s{S_T+1}
    s_add_u32 s{S_Q}, s4, s{S_T}
    s_addc_u32 s{S_Q+1}, s5, 0
    s_mul_i32 s{S_T}, s{S_W}, {4*7168}
    s_mul_i32 s{S_T+1}, s{S_CB}, 224
    s_add_u32 s{S_T}, s{S_T}, s{S_T+1}
    s_add_u32 s{S_G}, s6, s{S_T}
    s_addc_u32 s{S_G+1}, s7, 0
    s_add_u32 s{S_U}, s8, s{S_T}
    s_addc_u32 s{S_U+1}, s9, 0""")
    a(f"""s_lshl_b32 s{S_LA0}, s{S_W}, 11
    s_add_u32 s{S_LA1}, s{S_LA0}, 1024
    s_lshl_b32 s{S_T}, s{S_W}, 10
    s_add_u32 s{S_LQ}, s{S_T}, {LQ}
    s_add_u32 s{S_LG}, s{S_T}, {LG}
    s_add_u32 s{S_LU}, s{S_T}, {LU}""")
    for st in range(3):
        for k in range(5):
            dma_one(a, k, st)
    for r in range(160):
        a(f"v_mov_b32 v{ACC+r}, 0")
    if diag:
        stamp(a, 1)
    a("s_waitcnt vmcnt(10)")
    a("s_barrier")
    if diag:
        stamp(a, 2)
    read_a(a, 0)
    for j in range(10):
        if j in (5,):
            a("s_waitcnt lgkmcnt(4)")
        read_b(a, j)
    loop = a.newlabel("g1_loop")
    a(f"s_mov_b32 s{S_CNT}, 7")
    a.label(loop)
    for u in range(4):
        stage(a, u, 5, True, True)
    a(f"""s_sub_u32 s{S_CNT}, s{S_CNT}, 1
    s_cmp_lg_u32 s{S_CNT}, 0
    s_cbranch_scc1 {loop}""")
    stage(a, 0, 5, True, True)
    stage(a, 1, 5, False, True)
    stage(a, 2, 0, False, True)
    stage(a, 3, 0, False, False, do_barrier=False)
    a("s_nop 15")
    if diag:
        stamp(a, 3)
    a("""v_mbcnt_lo_u32_b32 v2, -1, 0
    v_mbcnt_hi_u32_b32 v2, -1, v2
    v_lshrrev_b32 v3, 4, v2
    v_and_b32 v4, 15, v2""")
    a(f"""s_lshl_b32 s{S_T}, s{S_RB}, 8
    s_lshl_b32 s{S_T+1}, s{S_WM}, 6
    s_add_u32 s{S_T}, s{S_T}, s{S_T+1}
    v_add_u32 v5, s{S_T}, v4""")
    wn1 = a.newlabel("g1_ep_wn1")
    st2 = a.newlabel("g1_ep_st")
    QST, HST = 0, 49152
    a("s_barrier")
    a(f"""s_lshl_b32 s{S_T}, s{S_WM}, 6
    v_add_u32 v7, s{S_T}, v4""")
    a(f"s_cmp_eq_u32 s{S_WN}, 1\n s_cbranch_scc1 {wn1}")

    def stage_qkv(jlist):
        a(f"""v_mul_u32_u24 v6, 192, v7
        v_lshl_add_u32 v6, v3, 3, v6""")
        for i in range(4):
            for j in jlist:
                b = acc(j, i)
                a(f"v_cvt_pk_bf16_f32 v8, v{b}, v{b+1}")
                a(f"v_cvt_pk_bf16_f32 v9, v{b+2}, v{b+3}")
                a(f"ds_write_b64 v6, v[8:9] offset:{QST + i*16*192 + j*32}")

    def stage_h(pairs):
        a(f"""v_mul_u32_u24 v6, 224, v7
        v_lshl_add_u32 v6, v3, 3, v6""")
        for i in range(4):
            for (jg, ju, slot) in pairs:
                g0, u0 = acc(jg, i), acc(ju, i)
                silu4(a, g0, 16, 20)
                rbf4(a, 24, u0)
                for r in range(4):
                    a(f"v_mul_f32 v{12+r}, v{16+r}, v{24+r}")
                a("v_cvt_pk_bf16_f32 v8, v12, v13")
                a("v_cvt_pk_bf16_f32 v9, v14, v15")
                a(f"ds_write_b64 v6, v[8:9] offset:{HST + i*16*224 + slot*32}")

    stage_qkv(range(6))
    stage_h([(6, 8, 0), (7, 9, 1)])
    a(f"s_branch {st2}")
    a.label(wn1)
    stage_h([(jj, 5 + jj, 2 + jj) for jj in range(5)])
    a.label(st2)
    a("s_waitcnt lgkmcnt(0)")
    a("s_barrier")
    a(f"""s_lshl_b32 s{S_T}, s{S_RB}, 8
    s_lshl_b32 s{S_T+1}, s{S_W}, 5
    s_add_u32 s{S_T+2}, s{S_T}, s{S_T+1}
    s_mul_i32 s{S_T+3}, s{S_CB}, 192
    s_add_u32 s{S_T+3}, s{S_T+3}, {WS_QKV}
    s_mul_i32 s{S_T+4}, s{S_CB}, 224
    s_add_u32 s{S_T+4}, s{S_T+4}, {WS_H}""")
    nld = 0
    for (nch, magic, ninst, base, gstride, soff, rb_) in ((12, 5462, 6, QST, 6144, S_T+3, 192), (14, 4682, 7, HST, 7168, S_T+4, 224)):
        for t in range(ninst):
            a(f"""v_add_u32 v10, {t*64}, v2
            v_mul_u32_u24 v11, {magic}, v10
            v_lshrrev_b32 v11, 16, v11
            v_mul_u32_u24 v12, {nch}, v11
            v_sub_u32 v12, v10, v12
            v_add_u32 v13, s{S_T+1}, v11
            v_mul_u32_u24 v14, {rb_}, v13
            v_lshl_add_u32 v14, v12, 4, v14
            ds_read_b128 {vr(32+4*nld,4)}, v14 offset:{base}
            v_add_u32 v13, s{S_T+2}, v11
            v_mul_u32_u24 v13, {gstride}, v13
            v_lshl_add_u32 v13, v12, 4, v13
            v_add_u32 v{88+nld}, s{soff}, v13""")
            nld += 1
    for k in range(nld):
        a(f"s_waitcnt lgkmcnt({nld-1-k})")
        a(f"global_store_dwordx4 v{88+k}, {vr(32+4*k,4)}, s[10:11]")
    a.label(end)
    if diag:
        a("s_waitcnt vmcnt(0)")
        stamp(a, 4)
        a("s_memrealtime s[78:79]")
        a("s_waitcnt lgkmcnt(0)")
        a(f"s_lshl_b32 s{S_T}, s2, 3\n s_add_u32 s{S_T}, s{S_T}, s{S_W}\n s_lshl_b32 s{S_T}, s{S_T}, 6\n s_add_u32 s{S_T}, s{S_T}, 0x4000000")
        a(f"v_mov_b32 v2, s{S_T}")
        for i in range(16):
            a(f"v_mov_b32 v3, s{64+i}")
            a(f"global_store_dword v2, v3, s[10:11] offset:{4*i}")
    a("s_endpgm")
    a.label(early)
    a("s_endpgm")
    return kernel_descriptor(name, 256, 96)
```

```python
class Asm:
    def __init__(self):
        self.lines = []
        self._lbl = 0

    def __call__(self, s=""):
        for l in s.split("\n"):
            self.lines.append("    " + l.strip() if l.strip() and not l.strip().endswith(":") else l.strip())

    def label(self, name):
        self.lines.append(name + ":")

    def newlabel(self, base):
        self._lbl += 1
        return f"L_{base}_{self._lbl}"

    def comment(self, s):
        self.lines.append("    ; " + s)

    def text(self):
        return "\n".join(self.lines) + "\n"


def vr(a, n):
    return f"v[{a}:{a+n-1}]"


def sr(a, n=2):
    return f"s[{a}:{a+n-1}]"


WS_XN = 0x0
WS_QKV = 0x400000
WS_H = 0x1000000
WS_O = 0x1E00000
WS_END = 0x2200000

KA_X, KA_WQKV, KA_WO, KA_BX, KA_W1, KA_W3, KA_W2, KA_OUT, KA_DBG, KA_WS = [8 * i for i in range(10)]


def kernel_header(a, name):
    a.lines.append(".globl " + name)
    a.lines.append(".p2align 8")
    a.lines.append(f".type {name},@function")
    a.label(name)


def kernel_descriptor(name, vgpr, sgpr, accum=None):
    accum = accum if accum is not None else ((vgpr + 3) // 4) * 4
    return f""".amdhsa_kernel {name}
  .amdhsa_next_free_vgpr {vgpr}
  .amdhsa_next_free_sgpr {sgpr}
  .amdhsa_accum_offset {accum}
  .amdhsa_group_segment_fixed_size 0
  .amdhsa_kernarg_size 80
  .amdhsa_user_sgpr_count 2
  .amdhsa_user_sgpr_kernarg_segment_ptr 1
  .amdhsa_system_sgpr_workgroup_id_x 1
.end_amdhsa_kernel
"""


def wave_sum_f32(a, v, tmp, s0):
    a(f"s_nop 1")
    for sh in (1, 2, 4, 8):
        a(f"v_add_f32 {tmp}, {v}, {v} row_shr:{sh} bound_ctrl:0")
        a(f"v_mov_b32 {v}, {tmp}")
        a(f"s_nop 1")
    for i, ln in enumerate((15, 31, 47, 63)):
        a(f"v_readlane_b32 s{s0+i}, {v}, {ln}")
    a("s_nop 1")
    a(f"v_mov_b32 {v}, s{s0}")
    a(f"v_add_f32 {v}, s{s0+1}, {v}")
    a(f"v_add_f32 {v}, s{s0+2}, {v}")
    a(f"v_add_f32 {v}, s{s0+3}, {v}")


def round_bf16_f32(a, dst, src):
    a(f"v_cvt_pk_bf16_f32 {dst}, {src}, {src}")
    a(f"v_lshlrev_b32 {dst}, 16, {dst}")


def silu4(a, src, tg, tt):
    for r in range(4):
        a(f"v_cvt_pk_bf16_f32 v{tg+r}, v{src+r}, v{src+r}")
    for r in range(4):
        a(f"v_lshlrev_b32 v{tg+r}, 16, v{tg+r}")
    for r in range(4):
        a(f"v_mul_f32 v{tt+r}, 0xbfb8aa3b, v{tg+r}")
    for r in range(4):
        a(f"v_exp_f32 v{tt+r}, v{tt+r}")
    for r in range(4):
        a(f"v_add_f32 v{tt+r}, 1.0, v{tt+r}")
    for r in range(4):
        a(f"v_rcp_f32 v{tt+r}, v{tt+r}")
    for r in range(4):
        a(f"v_mul_f32 v{tg+r}, v{tg+r}, v{tt+r}")
    for r in range(4):
        a(f"v_cvt_pk_bf16_f32 v{tg+r}, v{tg+r}, v{tg+r}")
    for r in range(4):
        a(f"v_lshlrev_b32 v{tg+r}, 16, v{tg+r}")


def rbf4(a, dst, src):
    for r in range(4):
        a(f"v_cvt_pk_bf16_f32 v{dst+r}, v{src+r}, v{src+r}")
    for r in range(4):
        a(f"v_lshlrev_b32 v{dst+r}, 16, v{dst+r}")


def xcd_dequeue(a, per_xcd, s_out, early_label, lds_off=0):
    done = a.newlabel("xq_done")
    nxt = a.newlabel("xq_next")
    skip = a.newlabel("xq_skip")
    a(f"""s_load_dwordx2 s[40:41], s[0:1], {KA_DBG}
    s_getreg_b32 s42, hwreg(HW_REG_XCC_ID)
    s_and_b32 s42, s42, 7
    v_cmp_eq_u32 vcc, 0, v0
    s_and_saveexec_b64 s[44:45], vcc
    s_cbranch_execz {skip}
    s_waitcnt lgkmcnt(0)
    s_mov_b32 s43, 0
    v_mov_b32 v21, s41
    v_mov_b32 v22, 1""")
    a.label(nxt)
    a(f"""s_add_u32 s46, s42, s43
    s_and_b32 s46, s46, 7
    s_lshl_b32 s47, s46, 2
    v_mov_b32 v20, s47
    v_add_co_u32 v20, vcc, s40, v20
    v_addc_co_u32 v21, vcc, 0, v21, vcc
    global_atomic_add v23, v[20:21], v22, off sc0
    v_mov_b32 v21, s41
    s_waitcnt vmcnt(0)
    s_nop 0
    v_readfirstlane_b32 s47, v23
    s_cmp_lt_u32 s47, {per_xcd}
    s_cbranch_scc1 {done}
    s_add_u32 s43, s43, 1
    s_cmp_lt_u32 s43, 8
    s_cbranch_scc1 {nxt}
    s_mov_b32 s46, 0
    s_mov_b32 s47, -1""")
    a.label(done)
    a(f"""s_mul_i32 s46, s46, {per_xcd}
    s_add_u32 s46, s46, s47
    s_cmp_eq_u32 s47, -1
    s_cselect_b32 s46, -1, s46
    v_mov_b32 v20, {lds_off}
    v_mov_b32 v23, s46
    ds_write_b32 v20, v23""")
    a.label(skip)
    a(f"""s_mov_b64 exec, s[44:45]
    s_waitcnt lgkmcnt(0)
    s_barrier
    v_mov_b32 v20, {lds_off}
    ds_read_b32 v23, v20
    s_waitcnt lgkmcnt(0)
    s_nop 0
    v_readfirstlane_b32 {s_out}, v23
    s_barrier
    s_cmp_eq_u32 {s_out}, -1
    s_cbranch_scc1 {early_label}""")
```
